```python
import torch

def _softmax(x, axis=-1):
    return torch.softmax(x, dim=axis)
def _gelu(x):
    return torch.nn.functional.gelu(x, approximate="tanh")
def _silu(x):
    return torch.nn.functional.silu(x)
def _sigmoid(x):
    return torch.sigmoid(x)
def _layernorm(x, axis=-1, eps=1e-5):
    m = x.mean(dim=axis, keepdim=True)
    v = x.var(dim=axis, keepdim=True, unbiased=False)
    return (x - m) / torch.sqrt(v + eps)
def _scatter_add(tgt, idx, src, axis=0):
    return tgt.clone().index_add_(axis, idx, src)
def _segment_sum(src, seg, n):
    out = torch.zeros((n,) + src.shape[1:], dtype=src.dtype)
    return out.index_add_(0, seg, src)
def _pad(x, pw):
    flat = tuple(v for pair in reversed(pw) for v in pair)
    return torch.nn.functional.pad(x, flat)

kernel_name = 'interleave_layers__sliding_local_dilated__swiglu_ffn__prompt'

def setup_inputs():

    _w = (lambda a: (lambda t: t.to(torch.bfloat16) if t.is_floating_point() else t)(torch.as_tensor(a)))
    def _A_setup():
        B, S, D = 1, 2048, 448
        return {
            "x": _w((lambda *s: torch.randn(*s, dtype=torch.bfloat16) * 0.05)(B, S, D)),
            "wqkv": _w((lambda *s: torch.randn(*s, dtype=torch.bfloat16) * 0.05)(D, 3 * D)),
            "wo": _w((lambda *s: torch.randn(*s, dtype=torch.bfloat16) * 0.05)(D, D)),
        }
    _A_in = _A_setup()

    def _B_setup():
        B, S, D, F = 1, 2048, 448, 1792
        return {
            "x": _w((lambda *s: torch.randn(*s, dtype=torch.bfloat16) * 0.05)(B, S, D)),
            "w_gate": _w((lambda *s: torch.randn(*s, dtype=torch.bfloat16) * 0.05)(D, F)),
            "w_up": _w((lambda *s: torch.randn(*s, dtype=torch.bfloat16) * 0.05)(D, F)),
            "w_down": _w((lambda *s: torch.randn(*s, dtype=torch.bfloat16) * 0.05)(F, D)),
        }
    _B_in = _B_setup()

    return {
        "A_x": _A_in["x"],
        "A_wqkv": _A_in["wqkv"],
        "A_wo": _A_in["wo"],
        "B_x": _B_in["x"],
        "B_w_gate": _B_in["w_gate"],
        "B_w_up": _B_in["w_up"],
        "B_w_down": _B_in["w_down"],
    }

def reference(A_x, A_wqkv, A_wo, B_x, B_w_gate, B_w_up, B_w_down):
    def _A_ref(x, wqkv, wo):
        B, S, D = x.shape
        H = 16; Dh = D // H
        W, dil = 8, 2
        qkv = (lambda x, *d: x.permute(*d))((x @ wqkv).reshape(B, S, 3, H, Dh), 2, 0, 3, 1, 4)
        q, k, v = qkv[0], qkv[1], qkv[2]
        scale = Dh ** -0.5
        pos = torch.arange(S)
        off = torch.arange(W) * dil
        idx = pos[:, None] - off[None, :]
        mask = idx >= 0
        idx_c = torch.where(mask, idx, 0).reshape(-1)
        kg = k[:, :, idx_c, :].reshape(B, H, S, W, Dh)
        vg = v[:, :, idx_c, :].reshape(B, H, S, W, Dh)
        logits = torch.einsum("bhsd,bhswd->bhsw", q, kg) * scale
        logits = torch.where(mask[None, None, :, :], logits, -1e9)
        attn = _softmax(logits, axis=-1)
        o = torch.einsum("bhsw,bhswd->bhsd", attn, vg)
        return (lambda x, *d: x.permute(*d))(o, 0, 2, 1, 3).reshape(B, S, D) @ wo

    def _B_ref(x, w_gate, w_up, w_down):
        g = _silu(x @ w_gate)
        u = x @ w_up
        return (g * u) @ w_down

    x = A_x
    x = x + _A_ref(_layernorm(x, axis=-1), A_wqkv, A_wo)
    x = x + _B_ref(_layernorm(x, axis=-1), B_w_gate, B_w_up, B_w_down)
    x = x + _A_ref(_layernorm(x, axis=-1), A_wqkv, A_wo)
    x = x + _B_ref(_layernorm(x, axis=-1), B_w_gate, B_w_up, B_w_down)
    return x
```

```python
import re

_REG_RE = re.compile(r'^(-|\|)?(abs\()?([vas])(\d+|\[(\d+):(\d+)\])\)?\|?$')


def regs_of(op):
    op = op.strip()
    if op in ('vcc', 'exec'):
        return [op]
    if op in ('vcc_lo', 'vcc_hi'):
        return ['vcc']
    if op in ('exec_lo', 'exec_hi'):
        return ['exec']
    if op == 'm0':
        return ['m0']
    m = _REG_RE.match(op)
    if not m:
        return []
    k = m.group(3)
    if m.group(5) is not None:
        return [f'{k}{i}' for i in range(int(m.group(5)), int(m.group(6)) + 1)]
    return [f'{k}{m.group(4)}']


def split_ops(s):
    out, depth, cur = [], 0, ''
    for ch in s:
        if ch in '[(':
            depth += 1
        if ch in '])':
            depth -= 1
        if ch == ',' and depth == 0:
            out.append(cur.strip())
            cur = ''
        else:
            cur += ch
    if cur.strip():
        out.append(cur.strip())
    return out


TRANS = ('v_exp_f32', 'v_log_f32', 'v_rcp_f32', 'v_rsq_f32', 'v_sqrt_f32', 'v_sin_f32', 'v_cos_f32')


class Ins:
    __slots__ = ('text', 'mn', 'kind', 'reads', 'writes', 'passes', 'srcc', 'srcab', 'wide_store', 'slot',
                 'is_trans', 'is_dpp', 'is_perml', 'is_rdlane', 'is_dot', 'sgpr_const_reads')


def parse(text):
    t = text.strip()
    sp = t.split(None, 1)
    mn = sp[0]
    rest = sp[1] if len(sp) > 1 else ''
    ops_all = split_ops(rest)
    ops = []
    mods = ''
    for i, o in enumerate(ops_all):
        parts = o.split()
        ops.append(parts[0] if parts else '')
        if len(parts) > 1:
            mods += ' ' + ' '.join(parts[1:])
    I = Ins()
    I.text = t
    I.mn = mn
    I.reads, I.writes = [], []
    I.passes = 0
    I.srcc, I.srcab = [], []
    I.wide_store = []
    I.is_trans = mn.replace('_e32', '').replace('_e64', '') in TRANS
    I.is_dpp = '_dpp' in mn or 'row_' in mods or 'quad_perm' in mods
    I.is_perml = mn.startswith('v_permlane')
    I.is_rdlane = mn.startswith('v_readfirstlane') or mn.startswith('v_readlane')
    I.is_dot = mn.startswith('v_dot')
    R = [regs_of(o) for o in ops]
    flat = lambda l: [x for y in l for x in y]
    if mn.startswith('v_mfma'):
        I.kind = 'mfma'
        I.writes = R[0]
        I.srcab = R[1] + R[2]
        I.srcc = R[3]
        I.reads = R[1] + R[2] + R[3]
        I.passes = 8 if '32x32x16' in mn else 4 if '16x16x32' in mn else None
        assert I.passes
    elif mn.startswith('v_'):
        I.kind = 'valu'
        if I.is_perml and 'swap' in mn:
            I.writes = R[0] + R[1]
            I.reads = R[0] + R[1]
        elif mn.startswith('v_nop'):
            pass
        elif mn.startswith(('v_add_co', 'v_sub_co', 'v_subrev_co', 'v_addc_co', 'v_subb_co')):
            I.writes = R[0] + R[1]
            I.reads = flat(R[2:])
        else:
            I.writes = R[0]
            I.reads = flat(R[1:])
            if mn.startswith(('v_fmac', 'v_dot2c', 'v_writelane')) or I.is_dpp or 'dst_sel' in mods:
                I.reads = I.reads + R[0]
        I.reads = I.reads + ['exec']
    elif mn.startswith('ds_'):
        I.kind = 'ds'
        if mn.startswith(('ds_read', 'ds_bpermute', 'ds_permute', 'ds_swizzle')) or '_rtn' in mn:
            I.writes = R[0]
            I.reads = flat(R[1:])
        else:
            I.reads = flat(R)
        I.reads = I.reads + ['exec']
    elif mn.startswith(('buffer_', 'global_')):
        I.kind = 'vmem'
        if ' lds' in (mods + ' ') and 'load' in mn:
            I.reads = flat(R) + ['m0']
        elif 'load' in mn:
            I.writes = R[0]
            I.reads = flat(R[1:])
            if 'd16' in mn:
                I.reads = I.reads + R[0]
        elif 'atomic' in mn:
            I.reads = flat(R)
            if 'sc0' in mods:
                d = R[0]
                I.writes = d[:len(d) // 2] if 'cmpswap' in mn else d
            if 'x2' in mn and 'cmpswap' in mn:
                I.wide_store = R[0]
        elif 'store' in mn:
            I.reads = flat(R)
            if 'x3' in mn or 'x4' in mn:
                I.wide_store = R[0] if mn.startswith('buffer_') else R[1]
        else:
            pass
        I.reads = I.reads + ['exec']
    elif mn.startswith(('s_load', 's_buffer_load', 's_memtime', 's_memrealtime')):
        I.kind = 'smem'
        I.writes = R[0]
        I.reads = flat(R[1:])
    elif mn.startswith('s_'):
        I.kind = 'salu'
        if mn.startswith(('s_cmp', 's_bitcmp')):
            I.reads = flat(R)
            I.writes = ['scc']
        elif mn.startswith(('s_cbranch', 's_branch', 's_barrier', 's_waitcnt', 's_nop', 's_endpgm', 's_sleep',
                            's_setprio', 's_setpc')):
            I.reads = flat(R)
            if 'vcc' in mn:
                I.reads.append('vcc')
            if 'exec' in mn:
                I.reads.append('exec')
        else:
            I.writes = R[0] + ['scc']
            I.reads = flat(R[1:])
            if 'saveexec' in mn:
                I.writes = I.writes + ['exec']
                I.reads = I.reads + ['exec']
            if mn.startswith(('s_addk', 's_mulk', 's_cmov')):
                I.reads = I.reads + R[0]
    else:
        raise ValueError('unknown instr ' + t)
    return I


class Prog:
    def __init__(self):
        self.out = []
        self.slot = 0
        self.hist = []
        self.vm = []
        self.lg = []
        self.nid = 0
        self.nops = 0
        self.ninstr = 0

    def raw(self, s):
        self.out.append(s)

    def comment(self, s):
        self.out.append('    ; ' + s)

    def _push(self, I, nslots=1):
        I.slot = self.slot
        self.slot += nslots
        self.hist.append(I)
        if len(self.hist) > 40:
            self.hist.pop(0)
        self.out.append('    ' + I.text)
        self.ninstr += 1

    def nop(self, n):
        while n > 0:
            k = min(n, 16)
            I = parse(f's_nop {k - 1}')
            self._push(I, k)
            self.nops += k
            n -= k

    def _waitcnt(self, vm=None, lg=None):
        parts = []
        if vm is not None:
            vm = min(vm, 63)
            parts.append(f'vmcnt({vm})')
            self.vm = self.vm[len(self.vm) - vm:] if vm < len(self.vm) else self.vm
            if vm == 0:
                self.vm = []
        if lg is not None:
            lg = min(lg, 15)
            parts.append(f'lgkmcnt({lg})')
            self.lg = self.lg[len(self.lg) - lg:] if lg < len(self.lg) else self.lg
            if lg == 0:
                self.lg = []
        if parts:
            self._push(parse('s_waitcnt ' + ' '.join(parts)))

    def wait(self, vm=None, lg=None):
        if vm is not None and len(self.vm) <= vm:
            vm = None
        if lg is not None and len(self.lg) <= lg:
            lg = None
        if lg is not None and any(x[2] for x in self.lg):
            lg = 0
        self._waitcnt(vm, lg)

    def wait_tok(self, tok):
        for i, x in enumerate(self.vm):
            if x[0] == tok:
                self._waitcnt(vm=len(self.vm) - 1 - i)
                return
        for i, x in enumerate(self.lg):
            if x[0] == tok:
                n = len(self.lg) - 1 - i
                if any(y[2] for y in self.lg):
                    n = 0
                self._waitcnt(lg=n)
                return

    def _need_states(self, I):
        need = 0
        rd, wr = set(I.reads), set(I.writes)
        for P in self.hist:
            dist = self.slot - P.slot - 1
            req = 0
            pw = set(P.writes)
            if P.kind == 'mfma':
                big = {4: 8, 8: 12}[P.passes]
                if I.kind == 'mfma':
                    if pw & set(I.srcab):
                        req = max(req, big)
                    if pw & set(I.srcc):
                        if P.writes == I.srcc and P.passes == I.passes:
                            req = max(req, 0)
                        else:
                            req = max(req, {4: 6, 8: 10}[P.passes])
                    elif pw & wr:
                        req = max(req, {4: 6, 8: 10}[P.passes])
                elif I.kind in ('valu', 'ds', 'vmem'):
                    if pw & (rd | wr):
                        req = max(req, big)
                    if set(P.srcc) & wr:
                        req = max(req, {4: 3, 8: 7}[P.passes])
            elif P.kind == 'valu':
                pv = {r for r in pw if r[0] in 'va' and r not in ('vcc',)}
                ps = {r for r in pw if r[0] == 's' or r == 'vcc'}
                if I.kind == 'mfma' and pv & rd:
                    req = max(req, 3 if P.is_dot else 2)
                if I.kind == 'valu':
                    if P.is_trans and not I.is_trans and pv & rd:
                        req = max(req, 1)
                    if P.is_trans and I.is_trans and pv & rd:
                        req = max(req, 1)
                    if (I.is_dpp or I.is_perml) and pv & rd:
                        req = max(req, 2)
                    if I.is_rdlane and pv & rd:
                        req = max(req, 1)
                    if ps & rd:
                        req = max(req, 4 if (I.mn.startswith('v_readlane') or I.mn.startswith('v_writelane')) else 2)
                    if P.is_dot and pv & (rd | wr):
                        same_acc = (I.mn == P.mn and I.writes == P.writes and
                                    not (pv & set(x for o in [I.reads[:-1]] for x in o if x not in I.writes)))
                        if not same_acc:
                            req = max(req, 3)
                if P.is_dot and I.kind in ('ds', 'vmem') and pv & rd:
                    req = max(req, 3)
                if I.kind in ('vmem',) and ps & rd:
                    req = max(req, 5)
                if I.kind == 'salu' and ps & rd:
                    req = max(req, 1)
                if 'exec' in pw:
                    req = max(req, 5)
            elif P.kind == 'vmem':
                if P.wide_store and set(P.wide_store) & wr:
                    req = max(req, 2)
            elif P.kind == 'salu':
                if 'm0' in pw and 'm0' in rd and I.kind in ('vmem', 'ds'):
                    req = max(req, 1)
            if req > dist:
                need = max(need, req - dist)
        return need

    def emit(self, text):
        I = parse(text)
        touched = set(I.reads) | set(I.writes)
        vm = lg = None
        for i, x in enumerate(self.vm):
            if x[1] & touched:
                vm = len(self.vm) - 1 - i
        for i, x in enumerate(self.lg):
            if x[1] & touched:
                lg = len(self.lg) - 1 - i
        if lg is not None and any(y[2] for y in self.lg):
            lg = 0
        if vm is not None or lg is not None:
            self._waitcnt(vm, lg)
        n = self._need_states(I)
        if n:
            self.nop(n)
        self._push(I)
        self.nid += 1
        if I.kind == 'vmem' and not I.mn.startswith(('buffer_inv', 'buffer_wbl2')):
            self.vm.append((self.nid, set(I.writes)))
        elif I.kind == 'ds':
            self.lg.append((self.nid, set(I.writes), False))
        elif I.kind == 'smem':
            self.lg.append((self.nid, set(I.writes), True))
        return self.nid

    __call__ = emit

    def flush(self, mem=True):
        if mem:
            self.wait(vm=0, lg=0)
        need = 0
        for P in self.hist:
            dist = self.slot - P.slot - 1
            req = 0
            if P.kind == 'mfma':
                req = {4: 8, 8: 12}[P.passes]
            elif P.kind == 'valu':
                req = 5 if any(r[0] == 's' or r in ('vcc', 'exec') for r in P.writes) else 3
            elif P.kind == 'vmem' and P.wide_store:
                req = 2
            elif P.kind == 'salu' and 'm0' in P.writes:
                req = 1
            need = max(need, req - dist)
        if need > 0:
            self.nop(need)
        self.hist = []

    def label(self, name):
        self.out.append(name + ':')

    def text(self):
        return '\n'.join(self.out) + '\n'


def vr(b, n=1):
    return f'v{b}' if n == 1 else f'v[{b}:{b + n - 1}]'


def ar(b, n=1):
    return f'a{b}' if n == 1 else f'a[{b}:{b + n - 1}]'


def sr(b, n=1):
    return f's{b}' if n == 1 else f's[{b}:{b + n - 1}]'


def interleave(main, fill, start=0, end=None):
    if end is None:
        end = len(main)
    n = end - start
    out = list(main[:start])
    fi = 0
    for i in range(n):
        out.append(main[start + i])
        tgt = (len(fill) * (i + 1) + n - 1) // n if n else len(fill)
        while fi < tgt:
            out.append(fill[fi])
            fi += 1
    out.extend(fill[fi:])
    out.extend(main[end:])
    return out
```

```python
import sys, math
from asmgen import Prog, vr, ar, sr, interleave

NAME = 'interleave_layers__sliding_local_dilated__swiglu_ffn__prompt'
ROWROUND = True

LAYER_STRIDE = 16 << 20
O_OFF, X1_OFF, X2_OFF, ST_OFF, H_OFF = 0, 2 << 20, 4 << 20, 6 << 20, 8 << 20
LW = 0
LS = 86016
LM = LS + 57344
L_CS1 = LM
L_CS3 = LM + 512
L_SA = LM + 1024
L_ST1 = LM + 1024 + 4096
LDS_BYTES = LM + 1024 + 4096 + 1024
L_HALO = LS
L_XCH = LS + 14336

S_X0, S_WQKV, S_WO, S_WG, S_WU, S_WD, S_OUT, S_WS, S_IN, S_XO = 8, 12, 16, 20, 24, 28, 32, 36, 40, 44
sU, sQ, sW, sJ, sHF, sRHO, sGAM = 52, 53, 54, 55, 56, 57, 58
sSB, sSS = 60, 61
sKOFF = 64
sOK0, sOK1 = 78, 79
sRK0, sRK1 = 80, 81
sT = 82
sSELLO, sSELHI = 94, 95
sWSB = 96
sMG3 = 98
sM2 = 100
sPTR = 64

vLANE, vL16, vG, vC, vLIN, vLOUT = 0, 1, 2, 3, 4, 5
VW = 16

LOG2E = 1.4426950408889634


def f32(x):
    import struct
    return '0x%08x' % struct.unpack('<I', struct.pack('<f', x))[0]


def srd(p, s, lo, hi, nbytes):
    p(f's_mov_b32 s{s}, s{lo}')
    p(f's_and_b32 s{s + 1}, s{hi}, 0xffff')
    p(f's_mov_b32 s{s + 2}, {nbytes}')
    p(f's_mov_b32 s{s + 3}, 0x20000')


def prologue(p, kname, layer, pre=None):
    p.raw(f'.globl {kname}\n.p2align 8\n.type {kname},@function\n{kname}:')
    p('s_cmp_ge_u32 s2, 256')
    p(f's_cbranch_scc1 {kname}_end')
    p(f's_load_dwordx16 {sr(sPTR, 16)}, s[0:1], 0')
    p(f's_load_dwordx4 {sr(sPTR + 16, 4)}, s[0:1], 64')
    p(f's_and_b32 s{sU}, s2, 7')
    p(f's_lshr_b32 s{sQ}, s2, 3')
    p('v_lshrrev_b32 v6, 6, v0')
    p(f'v_readfirstlane_b32 s{sW}, v6')
    p(f'v_and_b32 v{vLANE}, 63, v0')
    p(f'v_lshlrev_b32 v{vL16}, 4, v{vLANE}')
    p(f'v_lshrrev_b32 v{vG}, 4, v{vLANE}')
    p(f'v_and_b32 v{vC}, 15, v{vLANE}')
    p(f's_and_b32 s{sJ}, s{sQ}, 15')
    p(f's_lshr_b32 s{sHF}, s{sQ}, 4')
    p(f's_mul_i32 s{sRHO}, s{sQ}, 37')
    p(f's_lshr_b32 s{sRHO}, s{sRHO}, 8')
    p(f's_mul_i32 s{sGAM}, s{sRHO}, 7')
    p(f's_sub_u32 s{sGAM}, s{sQ}, s{sGAM}')
    p(f's_mov_b32 s{sSELLO}, 0x05040100')
    p(f's_mov_b32 s{sSELHI}, 0x07060302')
    p(f's_mov_b32 s{sMG3}, 0')
    p(f's_mov_b32 s{sMG3 + 1}, 0xffff0000')
    if pre:
        pre(p)
    P = sPTR
    srd(p, S_X0, P + 0, P + 1, 2048 * 896)
    srd(p, S_WQKV, P + 2, P + 3, 448 * 2688)
    srd(p, S_WO, P + 4, P + 5, 448 * 896)
    srd(p, S_WG, P + 8, P + 9, 448 * 3584)
    srd(p, S_WU, P + 10, P + 11, 448 * 3584)
    srd(p, S_WD, P + 12, P + 13, 1792 * 896)
    srd(p, S_OUT, P + 14, P + 15, 2048 * 896)
    p(f's_mov_b32 s{sWSB}, s{P + 18}')
    p(f's_mov_b32 s{sWSB + 1}, s{P + 19}')
    set_layer(p, layer)


def set_layer(p, layer):
    p(f's_add_u32 s{S_WS}, s{sWSB}, {layer * LAYER_STRIDE}')
    p(f's_addc_u32 s{S_WS + 1}, s{sWSB + 1}, 0')
    p(f's_and_b32 s{S_WS + 1}, s{S_WS + 1}, 0xffff')
    p(f's_mov_b32 s{S_WS + 2}, {LAYER_STRIDE}')
    p(f's_mov_b32 s{S_WS + 3}, 0x20000')
    p(f'v_mul_u32_u24 v6, 896, v{vC}')
    p(f'v_lshl_add_u32 v6, v{vG}, 5, v6')
    if layer == 0:
        for i in range(4):
            p(f's_mov_b32 s{S_IN + i}, s{S_X0 + i}')
        p(f's_mov_b32 s{sSB}, 128')
        p(f's_mov_b32 s{sSS}, 16')
        p(f'v_mov_b32 v{vLIN}, v6')
        p(f's_add_u32 s{S_XO}, s{sWSB}, {X2_OFF}')
        p(f's_addc_u32 s{S_XO + 1}, s{sWSB + 1}, 0')
        p(f's_and_b32 s{S_XO + 1}, s{S_XO + 1}, 0xffff')
        p(f's_mov_b32 s{S_XO + 2}, {2048 * 896}')
        p(f's_mov_b32 s{S_XO + 3}, 0x20000')
        p(f'v_mov_b32 v{vLOUT}, v{vL16}')
        p(f's_lshl_b32 s{sOK0}, s{sGAM}, 11')
        p(f's_add_u32 s{sOK1}, s{sOK0}, 1024')
    else:
        p(f's_add_u32 s{S_IN}, s{sWSB}, {X2_OFF}')
        p(f's_addc_u32 s{S_IN + 1}, s{sWSB + 1}, 0')
        p(f's_and_b32 s{S_IN + 1}, s{S_IN + 1}, 0xffff')
        p(f's_mov_b32 s{S_IN + 2}, {2048 * 896}')
        p(f's_mov_b32 s{S_IN + 3}, 0x20000')
        p(f's_mov_b32 s{sSB}, 2048')
        p(f's_mov_b32 s{sSS}, 1024')
        p(f'v_mov_b32 v{vLIN}, v{vL16}')
        for i in range(4):
            p(f's_mov_b32 s{S_XO + i}, s{S_OUT + i}')
        p(f'v_mov_b32 v{vLOUT}, v6')
        p(f's_lshl_b32 s{sOK0}, s{sGAM}, 7')
        p(f's_add_u32 s{sOK1}, s{sOK0}, 16')
    for k in range(14):
        if k == 0:
            p(f's_mov_b32 s{sKOFF}, 0')
        elif k & 1:
            p(f's_add_u32 s{sKOFF + k}, s{sKOFF + k - 1}, s{sSS}')
        else:
            p(f's_add_u32 s{sKOFF + k}, s{sKOFF + k - 2}, s{sSB}')
    p(f's_mul_i32 s{sRK0}, s{sGAM}, s{sSB}')
    p(f's_add_u32 s{sRK1}, s{sRK0}, s{sSS}')


def epilogue_end(p, kname):
    p.flush()
    p.label(f'{kname}_end')
    p('s_endpgm')


def kd(kname):
    return f""".amdhsa_kernel {kname}
  .amdhsa_next_free_vgpr 512
  .amdhsa_next_free_sgpr 102
  .amdhsa_accum_offset 256
  .amdhsa_group_segment_fixed_size 0
  .amdhsa_kernarg_size 80
  .amdhsa_user_sgpr_count 2
  .amdhsa_user_sgpr_kernarg_segment_ptr 1
  .amdhsa_system_sgpr_workgroup_id_x 1
  .amdhsa_float_denorm_mode_32 3
.end_amdhsa_kernel
"""


def barrier(p):
    p.wait(lg=0)
    p('s_barrier')


def bf16r(p, dst, src):
    p(f'v_cvt_pk_bf16_f32 v{dst}, v{src}, v{src}')
    p(f'v_lshlrev_b32 v{dst}, 16, v{dst}')


def finalize_stats(p, s1, s2, mean, rstd, tmp):
    p(f'v_mul_f32 v{mean}, {f32(1.0 / 448)}, v{s1}')
    p(f'v_mul_f32 v{tmp}, {f32(1.0 / 448)}, v{s2}')
    p(f'v_fma_f32 v{tmp}, -v{mean}, v{mean}, v{tmp}')
    p(f'v_max_f32 v{tmp}, 0, v{tmp}')
    if ROWROUND:
        bf16r(p, mean, mean)
        bf16r(p, tmp, tmp)
        p(f'v_add_f32 v{tmp}, {f32(1e-5)}, v{tmp}')
        bf16r(p, tmp, tmp)
        p(f'v_sqrt_f32 v{tmp}, v{tmp}')
        bf16r(p, tmp, tmp)
        p(f'v_rcp_f32 v{rstd}, v{tmp}')
    else:
        p(f'v_add_f32 v{tmp}, {f32(1e-5)}, v{tmp}')
        p(f'v_rsq_f32 v{rstd}, v{tmp}')


def greduce(p, regs, tmps, op='v_add_f32'):
    for sw in ('v_permlane32_swap_b32', 'v_permlane16_swap_b32'):
        for r, t in zip(regs, tmps):
            p(f'v_mov_b32 v{t}, v{r}')
        for r, t in zip(regs, tmps):
            p(f'{sw} v{r}, v{t}')
        for r, t in zip(regs, tmps):
            p(f'{op} v{r}, v{r}, v{t}')


RAW1 = VW


def p1_pre(p):
    p(f'v_cmp_eq_u32 vcc, 14, v{vC}')
    p('v_mov_b32 v7, 0x3f803f80')
    p('v_cndmask_b32 v7, 0, v7, vcc')
    for i in range(96):
        p(f'v_mov_b32 v{RAW1 + i}, v7')


def p1_init(p):
    p.comment('---- P1 init: Wqkv -> LDS')
    vA, vAi, vD = 8, 9, 112
    T = 120
    p(f's_mul_i32 s{sT}, s{sJ}, 56')
    p(f'v_mul_u32_u24 v{vA}, {16 * 2688}, v{vG}')
    p(f'v_lshl_add_u32 v{vA}, v{vC}, 2, v{vA}')
    p(f'v_add_u32 v{vA}, s{sT}, v{vA}')
    for e in range(8):
        p(f's_mov_b32 s{sT + 2 + e}, {e * 2688}')
    for i in range(4):
        p(f's_add_u32 s{sT}, s{sW}, {4 * i}')
        p(f's_min_u32 s{sT}, s{sT}, 13')
        p(f's_mul_i32 s{sT + 1}, s{sT}, 6144')
        p(f'v_add_u32 v{vD + i}, s{sT + 1}, v{vL16}')
        p(f's_lshr_b32 s{sT + 1}, s{sT}, 1')
        p(f's_mul_i32 s{sT + 1}, s{sT + 1}, {64 * 2688}')
        p(f's_and_b32 s{sT}, s{sT}, 1')
        p(f's_mul_i32 s{sT}, s{sT}, {8 * 2688}')
        p(f's_add_u32 s{sT}, s{sT}, s{sT + 1}')
        p(f'v_add_u32 v{116 + i}, s{sT}, v{vA}')
    p('s_mov_b32 exec_lo, 0x3fff3fff')
    p('s_mov_b32 exec_hi, 0x3fff3fff')
    for i in range(4):
        for grp in range(3):
            for e in range(8):
                p(f'buffer_load_dword v{RAW1 + i * 24 + grp * 8 + e}, v{116 + i}, {sr(S_WQKV, 4)}, s{sT + 2 + e} offen offset:{grp * 896}')
    p('s_mov_b64 exec, -1')
    n = 0
    for i in range(4):
        for grp in range(3):
            R = RAW1 + i * 24 + grp * 8
            t = T + (n % 4) * 8
            n += 1
            for d in range(4):
                p(f'v_perm_b32 v{t + d}, v{R + 2 * d + 1}, v{R + 2 * d}, s{sSELLO}')
            for d in range(4):
                p(f'v_perm_b32 v{t + 4 + d}, v{R + 2 * d + 1}, v{R + 2 * d}, s{sSELHI}')
            p(f'ds_write_b128 v{vD + i}, {vr(t, 4)} offset:{LW + (2 * grp) * 1024}')
            p(f'ds_write_b128 v{vD + i}, {vr(t + 4, 4)} offset:{LW + (2 * grp + 1) * 1024}')
    barrier(p)
    ones = 112
    for d in range(4):
        p(f'v_mov_b32 v{ones + d}, 0x3f803f80')
    for half in range(2):
        p(f's_add_u32 s{sT}, s{sW}, {4 * half}')
        p(f's_min_u32 s{sT}, s{sT}, 5')
        p(f's_lshl_b32 s{sT + 1}, s{sT}, 10')
        p(f'v_add_u32 v8, s{sT + 1}, v{vL16}')
        p(f'v_add_u32 v9, {7 * 6144}, v8')
        F = RAW1
        for k in range(14):
            a, off = (8, k * 6144) if k < 7 else (9, (k - 7) * 6144)
            p(f'ds_read_b128 {vr(F + 4 * k, 4)}, v{a} offset:{LW + off}')
        acc = 116
        for k in range(14):
            c = '0' if k == 0 else vr(acc, 4)
            p(f'v_mfma_f32_16x16x32_bf16 {vr(acc, 4)}, {vr(F + 4 * k, 4)}, {vr(ones, 4)}, {c}')
        p(f's_lshl_b32 s{sT + 1}, s{sT}, 6')
        p(f'v_lshlrev_b32 v8, 4, v{vG}')
        p(f'v_add_u32 v8, s{sT + 1}, v8')
        p(f'v_add_u32 v8, {L_CS1}, v8')
        p(f'ds_write_b128 v8, {vr(acc, 4)}')
    barrier(p)


def p1_body(p):
    p.comment('---- P1 body')
    ACC = 16
    HACC = 64
    WF = 68
    NWS = 9
    AF = 104
    NAS = 16
    SS = 168
    vXa, vXb, vXh, vW0, vW1, vWh0, vWh1, vHl = 8, 9, 10, 11, 12, 13, 14, 15
    p(f's_lshl_b32 s{sT}, s{sU}, 4')
    p(f's_lshl_b32 s{sT + 1}, s{sHF}, 3')
    p(f's_add_u32 s{sT}, s{sT}, s{sT + 1}')
    p(f's_lshl_b32 s{sT + 1}, s{sW}, 1')
    p(f's_add_u32 s{sT + 1}, s{sT + 1}, s{sT}')
    p(f's_mul_i32 s{sT + 2}, s{sT + 1}, 14336')
    p(f'v_add_u32 v{vXa}, s{sT + 2}, v{vLIN}')
    p(f'v_add_u32 v{vXb}, 14336, v{vXa}')
    p(f's_sub_u32 s{sT + 2}, s{sT}, 1')
    p(f's_mul_i32 s{sT + 2}, s{sT + 2}, 14336')
    p(f'v_add_u32 v{vXh}, s{sT + 2}, v{vLIN}')
    sMTA = sT + 1
    sMT0 = sT
    for i in range(4):
        p(f's_add_u32 s{sT + 2}, s{sW}, {4 * i}')
        p(f's_min_u32 s{sT + 2}, s{sT + 2}, 13')
        p(f's_lshl_b32 s{sT + 3}, s{sT + 2}, 10')
        p(f'v_add_u32 v{171 + i}, s{sT + 3}, v{vL16}')
        p(f's_lshr_b32 s{sT + 3}, s{sT + 2}, 1')
        p(f's_mul_i32 s{sT + 3}, s{sT + 3}, s{sSB}')
        p(f's_and_b32 s{sT + 2}, s{sT + 2}, 1')
        p(f's_mul_i32 s{sT + 2}, s{sT + 2}, s{sSS}')
        p(f's_add_u32 s{sT + 4 + i}, s{sT + 2}, s{sT + 3}')
        p(f'buffer_load_dwordx4 {vr(ACC + 4 * i, 4)}, v{vXh}, {sr(S_IN, 4)}, s{sT + 4 + i} offen sc1')

    def aload(idx):
        k, X = idx >> 1, idx & 1
        return f'buffer_load_dwordx4 {vr(AF + 4 * (idx % NAS), 4)}, v{vXb if X else vXa}, {sr(S_IN, 4)}, s{sKOFF + k} offen sc1'

    for idx in range(NAS):
        p(aload(idx))
    p(f'v_mov_b32 v{vW0}, v{vL16}')
    p(f'v_add_u32 v{vW1}, {48 * 1024}, v{vL16}')
    for i in range(3):
        p(f'v_mov_b32 v{SS + i}, 0')

    def wread(f):
        a, off = (vW0, f * 1024) if f < 48 else (vW1, (f - 48) * 1024)
        return f'ds_read_b128 {vr(WF + 4 * (f % NWS), 4)}, v{a} offset:{LW + off}'

    for i in range(4):
        p(f'v_add_u32 v{171 + i}, {L_HALO}, v{171 + i}')
        p(f'ds_write_b128 v{171 + i}, {vr(ACC + 4 * i, 4)}')
    for f in range(NWS):
        p(wread(f))
    for k in range(14):
        for n in range(6):
            f = 6 * k + n
            W = vr(WF + 4 * (f % NWS), 4)
            for X in range(2):
                A = vr(AF + 4 * ((2 * k + X) % NAS), 4)
                acc = vr(ACC + 24 * X + 4 * n, 4)
                c = '0' if k == 0 else acc
                if n < 4:
                    p(f'v_mfma_f32_16x16x32_bf16 {acc}, {W}, {A}, {c}')
                else:
                    p(f'v_mfma_f32_16x16x32_bf16 {acc}, {A}, {W}, {c}')
            if f + NWS < 84:
                p(wread(f + NWS))
            if n < 4:
                for X in range(2):
                    a = AF + 4 * ((2 * k + X) % NAS) + n
                    p(f'v_dot2c_f32_bf16 v{SS + X}, v{a}, v{a}')
        for X in range(2):
            idx = 2 * k + X + NAS
            if idx < 28:
                p(aload(idx))
    barrier(p)
    p(f's_lshl_b32 s{sT + 2}, s{sW}, 10')
    p(f's_add_u32 s{sT + 2}, s{sT + 2}, {LW + 2048}')
    p(f'v_add_u32 v{vWh0}, s{sT + 2}, v{vL16}')
    p(f'v_add_u32 v{vWh1}, {7 * 6144}, v{vWh0}')
    p(f'v_add_u32 v{vHl}, {L_HALO}, v{vL16}')
    def hread(k):
        a, off = (vWh0, k * 6144) if k < 7 else (vWh1, (k - 7) * 6144)
        return [f'ds_read_b128 {vr(AF + 8 * (k % 8), 4)}, v{a} offset:{off}',
                f'ds_read_b128 {vr(AF + 8 * (k % 8) + 4, 4)}, v{vHl} offset:{k * 1024}']
    for k in range(7):
        for s in hread(k):
            p(s)
    for k in range(14):
        b = AF + 8 * (k % 8)
        c = '0' if k == 0 else vr(HACC, 4)
        p(f'v_mfma_f32_16x16x32_bf16 {vr(HACC, 4)}, {vr(b, 4)}, {vr(b + 4, 4)}, {c}')
        for d in range(4):
            p(f'v_dot2c_f32_bf16 v{SS + 2}, v{b + 4 + d}, v{b + 4 + d}')
        if k + 7 < 14:
            for s in hread(k + 7):
                p(s)
    TM = WF
    S1 = TM
    TT = TM + 3
    MEAN, RSTD = TM + 9, TM + 12
    srcs = [ACC + 2, ACC + 24 + 2, HACC + 2]
    for i in range(3):
        p(f'v_cndmask_b32 v{S1 + i}, 0, v{srcs[i]}, {sr(sMG3, 2)}')
    greduce(p, [S1, S1 + 1, S1 + 2, SS, SS + 1, SS + 2], [TT + i for i in range(6)])
    MR = TM + 10
    assert MR % 2 == 0
    for i in range(3):
        finalize_stats(p, S1 + i, SS + i, MR + 2 * i, MR + 2 * i + 1, TT)
    vS = 8
    p(f's_lshl_b32 s{sT + 2}, s{sW}, 8')
    p(f's_add_u32 s{sT + 2}, s{sT + 2}, {L_ST1}')
    p(f'v_lshlrev_b32 v{vS}, 3, v{vC}')
    p(f'v_add_u32 v{vS}, s{sT + 2}, v{vS}')
    p(f'ds_write_b64 v{vS}, {vr(MR, 2)}')
    p(f'ds_write_b64 v{vS}, {vr(MR + 2, 2)} offset:128')
    p(f'v_lshlrev_b32 v{vS}, 5, v{vG}')
    p(f'v_add_u32 v{vS}, s{sT + 2}, v{vS}')
    VST = AF
    for X in range(2):
        p(f'ds_read_b128 {vr(VST + 8 * X, 4)}, v{vS} offset:{128 * X}')
        p(f'ds_read_b128 {vr(VST + 8 * X + 4, 4)}, v{vS} offset:{128 * X + 16}')
    CS = AF + 16
    p(f'v_lshlrev_b32 v9, 4, v{vG}')
    p(f'v_add_u32 v9, {L_CS1}, v9')
    for n in range(4):
        p(f'ds_read_b128 {vr(CS + 4 * n, 4)}, v9 offset:{64 * n}')
    p(f'v_lshlrev_b32 v10, 2, v{vC}')
    p(f'v_add_u32 v10, {L_CS1}, v10')
    for t in range(2):
        p(f'ds_read_b32 v{CS + 16 + t}, v10 offset:{64 * (4 + t)}')
    p(f's_lshl_b32 s{sT + 2}, s{sW}, 6')
    p(f'v_add_u32 v9, s{sT + 2}, v9')
    p(f'ds_read_b128 {vr(CS + 20, 4)}, v9 offset:128')
    hm, hr = MR + 4, MR + 5
    for r in range(4):
        p(f'v_fma_f32 v{HACC + r}, -v{hm}, v{CS + 20 + r}, v{HACC + r}')
        p(f'v_mul_f32 v{HACC + r}, v{HACC + r}, v{hr}')
    p(f'v_cvt_pk_bf16_f32 v{HACC}, v{HACC}, v{HACC + 1}')
    p(f'v_cvt_pk_bf16_f32 v{HACC + 1}, v{HACC + 2}, v{HACC + 3}')
    p(f'v_lshrrev_b32 v9, 2, v{vC}')
    p('v_lshlrev_b32 v9, 8, v9')
    p(f'v_lshl_add_u32 v9, v{vG}, 6, v9')
    p(f'v_and_b32 v10, 3, v{vC}')
    p('v_lshl_add_u32 v9, v10, 1, v9')
    p('v_add_u32 v9, 1024, v9')
    p(f's_cmp_lt_u32 s{sW}, 2')
    p(f's_cselect_b64 {sr(sM2, 2)}, -1, 0')
    p(f's_cselect_b32 s{sT + 2}, 2, 16')
    p(f'v_cndmask_b32 v9, v9, v{vL16}, {sr(sM2, 2)}')
    p(f's_and_b32 s{sT + 3}, s{sW}, 1')
    p(f's_lshl_b32 s{sT + 3}, s{sT + 3}, 3')
    p(f's_add_u32 s{sT + 3}, s{sT + 3}, {L_XCH}')
    p(f'v_add_u32 v9, s{sT + 3}, v9')
    p(f'v_add_u32 v10, s{sT + 2}, v9')
    p(f'v_add_u32 v11, s{sT + 2}, v10')
    p(f'v_add_u32 v12, s{sT + 2}, v11')
    p(f'ds_write_b16 v9, v{HACC}')
    p(f'ds_write_b16_d16_hi v10, v{HACC}')
    p(f'ds_write_b16 v11, v{HACC + 1}')
    p(f'ds_write_b16_d16_hi v12, v{HACC + 1}')
    QF = AF + 40
    KF = AF + 48
    VF = TM + 16
    qs, qsm = TM + 28, TM + 29
    qscale = (28 ** -0.5) * LOG2E
    for X in range(2):
        m, rs = MR + 2 * X, MR + 2 * X + 1
        A = ACC + 24 * X
        p(f'v_mul_f32 v{qs}, {f32(qscale)}, v{rs}')
        p(f'v_cndmask_b32 v{qsm}, v{qs}, 0, {sr(sMG3, 2)}')
        for n in range(4):
            for r in range(4):
                a = A + 4 * n + r
                p(f'v_fma_f32 v{a}, -v{m}, v{CS + 4 * n + r}, v{a}')
                sc = rs if n >= 2 else (qsm if r >= 2 else qs)
                p(f'v_mul_f32 v{a}, v{a}, v{sc}')
        for t in range(2):
            for h in range(2):
                p(f'v_cvt_pk_bf16_f32 v{QF + 4 * X + 2 * t + h}, v{A + 4 * t + 2 * h}, v{A + 4 * t + 2 * h + 1}')
                p(f'v_cvt_pk_bf16_f32 v{KF + 4 + 4 * X + 2 * t + h}, v{A + 8 + 4 * t + 2 * h}, v{A + 8 + 4 * t + 2 * h + 1}')
        for t in range(2):
            for r in range(4):
                a = A + 16 + 4 * t + r
                p(f'v_fma_f32 v{a}, -v{VST + 8 * X + 2 * r}, v{CS + 16 + t}, v{a}')
                p(f'v_mul_f32 v{a}, v{a}, v{VST + 8 * X + 2 * r + 1}')
            for h in range(2):
                p(f'v_cvt_pk_bf16_f32 v{VF + 6 * t + 2 + 2 * X + h}, v{A + 16 + 4 * t + 2 * h}, v{A + 16 + 4 * t + 2 * h + 1}')
    p(f's_lshl_b32 s{sT + 2}, s{sW}, 11')
    p(f's_add_u32 s{sT + 2}, s{sT + 2}, {L_XCH}')
    p(f'v_add_u32 v9, s{sT + 2}, v{vL16}')
    p(f'ds_write_b128 v9, {vr(KF + 8, 4)} offset:2048')
    p(f'ds_write_b64 v9, {vr(VF + 4, 2)} offset:{2048 + 1024}')
    p(f'ds_write_b64 v9, {vr(VF + 10, 2)} offset:{2048 + 1024 + 8}')
    barrier(p)
    p(f'ds_read_b128 {vr(KF, 4)}, v9')
    p(f'ds_read_b64 {vr(VF, 2)}, v9 offset:1024')
    p(f'ds_read_b64 {vr(VF + 6, 2)}, v9 offset:{1024 + 8}')
    BP, BC, BA = ACC, ACC + 4, ACC + 8
    NEG = f32(-1e30)
    p(f'v_lshlrev_b32 v10, 2, v{vG}')
    p(f'v_sub_u32 v10, v{vC}, v10')
    p(f'v_mov_b32 v11, {NEG}')
    for r in range(4):
        p(f'v_subrev_u32 v12, {r}, v10')
        p('v_and_b32 v13, 0xfffffff1, v12')
        p('v_cmp_eq_u32 vcc, 0, v13')
        p(f'v_cndmask_b32 v{BC + r}, v11, 0, vcc')
        p('v_add_u32 v12, 16, v12')
        p('v_and_b32 v13, 0xfffffff1, v12')
        p('v_cmp_eq_u32 vcc, 0, v13')
        p(f'v_cndmask_b32 v{BP + r}, v11, 0, vcc')
    p(f's_cmp_eq_u32 s{sMTA}, 0')
    p(f's_cselect_b64 {sr(sM2, 2)}, -1, 0')
    for r in range(4):
        p(f'v_cndmask_b32 v{BA + r}, v{BP + r}, v11, {sr(sM2, 2)}')
    p(f's_lshl_b32 s{sT + 2}, s{sMTA}, 14')
    p(f's_lshl_b32 s{sT + 3}, s{sJ}, 10')
    p(f's_add_u32 s{sT + 2}, s{sT + 2}, s{sT + 3}')
    p(f's_add_u32 s{sT + 2}, s{sT + 2}, {O_OFF}')
    p(f's_add_u32 s{sT + 3}, s{sT + 2}, 16384')
    for X in (1, 0):
        S = ACC + 12 + 24 * X if X else ACC + 12
        O = AF + 8 * X
        PF = AF + 16 + 4 * X
        mx, t0, sm = TM + 0 + 3 * X, TM + 1 + 3 * X, TM + 2 + 3 * X
        Q = vr(QF + 4 * X, 4)
        p(f'v_mfma_f32_16x16x32_bf16 {vr(S, 4)}, {vr(KF + 4 * X, 4)}, {Q}, {vr(BP if X else BA, 4)}')
        p(f'v_mfma_f32_16x16x32_bf16 {vr(S + 4, 4)}, {vr(KF + 4 + 4 * X, 4)}, {Q}, {vr(BC, 4)}')
        p(f'v_max3_f32 v{mx}, v{S}, v{S + 1}, v{S + 2}')
        p(f'v_max3_f32 v{mx}, v{mx}, v{S + 3}, v{S + 4}')
        p(f'v_max3_f32 v{mx}, v{mx}, v{S + 5}, v{S + 6}')
        p(f'v_max_f32 v{mx}, v{mx}, v{S + 7}')
        greduce(p, [mx], [t0], 'v_max_f32')
        for i in range(8):
            p(f'v_sub_f32 v{S + i}, v{S + i}, v{mx}')
        for i in range(8):
            p(f'v_exp_f32 v{S + i}, v{S + i}')
        p(f'v_add_f32 v{sm}, v{S}, v{S + 1}')
        for i in range(2, 8):
            p(f'v_add_f32 v{sm}, v{sm}, v{S + i}')
        for i in range(4):
            p(f'v_cvt_pk_bf16_f32 v{PF + i}, v{S + 2 * i}, v{S + 2 * i + 1}')
        for t in range(2):
            p(f'v_mfma_f32_16x16x32_bf16 {vr(O + 4 * t, 4)}, {vr(VF + 6 * t + 2 * X, 4)}, {vr(PF, 4)}, 0')
        greduce(p, [sm], [t0])
        p(f'v_rcp_f32 v{sm}, v{sm}')
        p(f'v_cndmask_b32 v{t0}, v{sm}, 0, {sr(sMG3, 2)}')
        for t in range(2):
            for r in range(4):
                p(f'v_mul_f32 v{O + 4 * t + r}, v{O + 4 * t + r}, v{t0 if r >= 2 else sm}')
        for r in range(4):
            p(f'v_cvt_pk_bf16_f32 v{S + r}, v{O + r}, v{O + 4 + r}')
        p(f'buffer_store_dwordx4 {vr(S, 4)}, v{vL16}, {sr(S_WS, 4)}, s{sT + 2 + X} offen sc1')


def wload64(p, srdW, vA, rowoff, nk, dest, RAW, nbatch):
    sidx = [0]

    def issue(k):
        R = RAW + 16 * (k % nbatch)
        last = None
        for e in range(8):
            off = rowoff(k, e)
            if last is not None and 0 <= off - last[1] <= 4095:
                s, imm = last[0], off - last[1]
            else:
                s = sT + (sidx[0] % 8)
                sidx[0] += 1
                p(f's_mov_b32 s{s}, {off}')
                last = (s, off)
                imm = 0
            p(f'buffer_load_dwordx2 {vr(R + 2 * e, 2)}, v{vA}, {sr(srdW, 4)}, s{s} offen offset:{imm}')

    for k in range(min(nbatch, nk)):
        issue(k)
    TMP = RAW + 16 * nbatch
    n = 0
    for k in range(nk):
        R = RAW + 16 * (k % nbatch)
        for t in range(4):
            kind, base = dest(k, t)
            sel = sSELHI if t & 1 else sSELLO
            for d in range(4):
                lo, hi = R + 2 * (2 * d) + (t >> 1), R + 2 * (2 * d + 1) + (t >> 1)
                if kind == 'v':
                    p(f'v_perm_b32 v{base + d}, v{hi}, v{lo}, s{sel}')
                else:
                    tt = TMP + (n % 8)
                    n += 1
                    p(f'v_perm_b32 v{tt}, v{hi}, v{lo}, s{sel}')
                    p(f'v_accvgpr_write_b32 a{base + d}, v{tt}')
        if k + nbatch < nk:
            issue(k + nbatch)


def w4_dest(k, t):
    return ('a', (k * 4 + t) * 4)


W2 = 112


def w2_dest(k, t):
    return ('v', W2 + (k * 4 + t) * 4)


def p4_init(p):
    p.comment('---- P4 init: Wd -> AGPR')
    vA = 8
    p(f'v_and_b32 v9, 1, v{vG}')
    p('v_lshlrev_b32 v9, 3, v9')
    p(f'v_lshrrev_b32 v10, 1, v{vG}')
    p('v_add_u32 v9, v9, v10')
    p('v_mul_u32_u24 v9, 896, v9')
    p(f'v_lshl_add_u32 v9, v{vC}, 3, v9')
    p(f's_mul_i32 s{sT}, s{sW}, {32 * 14 * 896}')
    p(f's_lshl_b32 s{sT + 1}, s{sGAM}, 7')
    p(f's_add_u32 s{sT}, s{sT}, s{sT + 1}')
    p(f'v_add_u32 v{vA}, s{sT}, v9')
    wload64(p, S_WD, vA, lambda k, e: (32 * k + 16 * (e >> 2) + 2 * (e & 3)) * 896, 14, w4_dest, VW, 7)


def p2_init(p):
    p.comment('---- P2 init: Wo -> VGPR')
    vA = 8
    p(f'v_mul_u32_u24 v9, {8 * 896}, v{vG}')
    p(f'v_lshl_add_u32 v9, v{vC}, 3, v9')
    p(f's_mul_i32 s{sT}, s{sW}, {28 * 4 * 896}')
    p(f's_lshl_b32 s{sT + 1}, s{sGAM}, 7')
    p(f's_add_u32 s{sT}, s{sT}, s{sT + 1}')
    p(f'v_add_u32 v{vA}, s{sT}, v9')
    wload64(p, S_WO, vA, lambda k, e: (28 * k + e) * 896, 4, w2_dest, VW, 4)


def pk_body(p, which):
    p.comment(f'---- P{which} body')
    if which == 4:
        NK, TSTR, IN_OFF = 14, 57344, H_OFF
        wreg = lambda k, t: ar((k * 4 + t) * 4, 4)
        FR, NFS = 16, 20
        ACC = 96
        R0, TB = 128, 144
        RES = 160
    else:
        NK, TSTR, IN_OFF = 4, 16384, O_OFF
        wreg = lambda k, t: vr(W2 + (k * 4 + t) * 4, 4)
        FR, NFS = 16, 16
        ACC = 80
        R0, TB = 16, 32
        RES = 48
    vB = [8, 9, 10, 11]
    vRed, vT = 12, 13
    p(f's_lshl_b32 s{sT}, s{sU}, 4')
    p(f's_lshl_b32 s{sT + 1}, s{sRHO}, 2')
    p(f's_add_u32 s{sT}, s{sT}, s{sT + 1}')
    sTILE = sT + 2
    sLT = sT + 6
    for i in range(4):
        p(f's_add_u32 s{sT + 1}, s{sW}, {i + 1}')
        p(f's_and_b32 s{sT + 1}, s{sT + 1}, 3')
        if i < 3:
            p(f's_mul_i32 s{sLT + i}, s{sT + 1}, 12288')
            p(f's_add_u32 s{sLT + i}, s{sLT + i}, {LS + 4096 * i}')
        p(f's_add_u32 s{sT + 1}, s{sT + 1}, s{sT}')
        p(f's_mul_i32 s{sTILE + i}, s{sT + 1}, {TSTR}')
        p(f's_add_u32 s{sTILE + i}, s{sTILE + i}, {IN_OFF}')
    sMTW = sT + 9
    p(f's_add_u32 s{sMTW}, s{sT}, s{sW}')
    p(f's_mul_i32 s{sT + 1}, s{sW}, {NK * 1024}')
    p(f'v_add_u32 v{vB[0]}, s{sT + 1}, v{vL16}')
    for n in range(1, (NK + 3) // 4):
        p(f'v_add_u32 v{vB[n]}, {4096 * n}, v{vB[0]}')

    def fload(f):
        i, k = divmod(f, NK)
        return f'buffer_load_dwordx4 {vr(FR + 4 * (f % NFS), 4)}, v{vB[k >> 2]}, {sr(S_WS, 4)}, s{sTILE + i} offen offset:{(k & 3) * 1024} sc1'

    NF = 4 * NK
    for f in range(min(NFS, NF)):
        p(fload(f))

    def resload():
        p(f's_mul_i32 s{sT + 1}, s{sMTW}, 14336')
        if which == 2:
            p(f'v_add_u32 v{vT}, s{sT + 1}, v{vLIN}')
            p(f'buffer_load_dwordx4 {vr(RES, 4)}, v{vT}, {sr(S_IN, 4)}, s{sRK0} offen sc1')
            p(f'buffer_load_dwordx4 {vr(RES + 4, 4)}, v{vT}, {sr(S_IN, 4)}, s{sRK1} offen sc1')
        else:
            p(f's_lshl_b32 s{sT + 10}, s{sGAM}, 11')
            p(f's_add_u32 s{sT + 1}, s{sT + 1}, s{sT + 10}')
            p(f's_add_u32 s{sT + 1}, s{sT + 1}, {X1_OFF}')
            p(f'buffer_load_dwordx4 {vr(RES, 4)}, v{vL16}, {sr(S_WS, 4)}, s{sT + 1} offen sc1')
            p(f'buffer_load_dwordx4 {vr(RES + 4, 4)}, v{vL16}, {sr(S_WS, 4)}, s{sT + 1} offen offset:1024 sc1')

    if which == 4:
        resload()
    for i in range(4):
        acc = ACC + 16 * (i & 1)
        for k in range(NK):
            f = i * NK + k
            B = vr(FR + 4 * (f % NFS), 4)
            for t in range(4):
                a = vr(acc + 4 * t, 4)
                p(f'v_mfma_f32_16x16x32_bf16 {a}, {wreg(k, t)}, {B}, {"0" if k == 0 else a}')
            if f + NFS < NF:
                p(fload(f + NFS))
        if i < 3:
            p(f'v_add_u32 v{vRed}, s{sLT + i}, v{vL16}')
            for t in range(4):
                p(f'ds_write_b128 v{vRed}, {vr(acc + 4 * t, 4)} offset:{1024 * t}')
        if i == 2:
            if which == 2:
                resload()
            barrier(p)
            p(f's_mul_i32 s{sT + 1}, s{sW}, 12288')
            p(f's_add_u32 s{sT + 1}, s{sT + 1}, {LS}')
            p(f'v_add_u32 v{vRed}, s{sT + 1}, v{vL16}')
            for t in range(4):
                p(f'ds_read_b128 {vr(R0 + 4 * t, 4)}, v{vRed} offset:{1024 * t}')
            for sl in (1, 2):
                for t in range(4):
                    p(f'ds_read_b128 {vr(TB + 4 * t, 4)}, v{vRed} offset:{4096 * sl + 1024 * t}')
                for x in range(16):
                    p(f'v_add_f32 v{R0 + x}, v{R0 + x}, v{TB + x}')
            for s in range(2):
                for d in range(4):
                    r = 2 * s + (d >> 1)
                    t = 2 * (d & 1)
                    src = RES + 4 * s + d
                    p(f'v_lshlrev_b32 v{TB}, 16, v{src}')
                    p(f'v_and_b32 v{TB + 1}, 0xffff0000, v{src}')
                    p(f'v_add_f32 v{R0 + 4 * t + r}, v{R0 + 4 * t + r}, v{TB}')
                    p(f'v_add_f32 v{R0 + 4 * (t + 1) + r}, v{R0 + 4 * (t + 1) + r}, v{TB + 1}')
    acc = ACC + 16
    for x in range(16):
        p(f'v_add_f32 v{R0 + x}, v{R0 + x}, v{acc + x}')
    OUT = TB
    for s in range(2):
        for d in range(4):
            r = 2 * s + (d >> 1)
            t = 2 * (d & 1)
            p(f'v_cvt_pk_bf16_f32 v{OUT + 4 * s + d}, v{R0 + 4 * t + r}, v{R0 + 4 * (t + 1) + r}')
    p(f's_mul_i32 s{sT + 1}, s{sMTW}, 14336')
    if which == 2:
        p(f's_lshl_b32 s{sT + 10}, s{sGAM}, 11')
        p(f's_add_u32 s{sT + 1}, s{sT + 1}, s{sT + 10}')
        p(f's_add_u32 s{sT + 1}, s{sT + 1}, {X1_OFF}')
        p(f'buffer_store_dwordx4 {vr(OUT, 4)}, v{vL16}, {sr(S_WS, 4)}, s{sT + 1} offen sc1')
        p(f'buffer_store_dwordx4 {vr(OUT + 4, 4)}, v{vL16}, {sr(S_WS, 4)}, s{sT + 1} offen offset:1024 sc1')
        s1, s2, one = ACC, ACC + 1, ACC + 4
        p(f'v_mov_b32 v{one}, 0x3f803f80')
        p(f'v_mov_b32 v{s1}, 0')
        p(f'v_mov_b32 v{s2}, 0')
        for x in range(8):
            p(f'v_dot2c_f32_bf16 v{s1}, v{OUT + x}, v{one}')
            p(f'v_dot2c_f32_bf16 v{s2}, v{OUT + x}, v{OUT + x}')
        greduce(p, [s1, s2], [ACC + 2, ACC + 3])
        p(f's_lshl_b32 s{sT + 1}, s{sMTW}, 7')
        p(f's_lshl_b32 s{sT + 10}, s{sGAM}, 14')
        p(f's_add_u32 s{sT + 1}, s{sT + 1}, s{sT + 10}')
        p(f's_add_u32 s{sT + 1}, s{sT + 1}, {ST_OFF}')
        p(f'v_lshlrev_b32 v{vT}, 3, v{vC}')
        p('s_mov_b64 exec, 0xffff')
        p(f'buffer_store_dwordx2 {vr(s1, 2)}, v{vT}, {sr(S_WS, 4)}, s{sT + 1} offen sc1')
        p('s_mov_b64 exec, -1')
    else:
        p(f'v_add_u32 v{vT}, s{sT + 1}, v{vLOUT}')
        p(f'buffer_store_dwordx4 {vr(OUT, 4)}, v{vT}, {sr(S_XO, 4)}, s{sOK0} offen sc1')
        p(f'buffer_store_dwordx4 {vr(OUT + 4, 4)}, v{vT}, {sr(S_XO, 4)}, s{sOK1} offen sc1')


def w3reg(f):
    return ('v', 176 + 4 * f) if f < 20 else ('a', 224 + 4 * (f - 20))


def w3op(f):
    k, b = w3reg(f)
    return vr(b, 4) if k == 'v' else ar(b, 4)


sTAU, sKH, sTT = 59, 62, 63


def p3_ids(p):
    p(f's_lshr_b32 s{sTAU}, s{sQ}, 1')
    p(f's_mul_i32 s{sTAU}, s{sTAU}, 7')
    p(f's_and_b32 s{sT}, s{sQ}, 1')
    p(f's_mul_i32 s{sT}, s{sT}, 3')
    p(f's_add_u32 s{sTAU}, s{sTAU}, s{sT}')
    p(f's_add_u32 s{sTAU}, s{sTAU}, s{sW}')
    p(f's_lshr_b32 s{sKH}, s{sTAU}, 1')
    p(f's_and_b32 s{sTT}, s{sTAU}, 1')


def p3_init(p):
    p.comment('---- P3 init: Wg/Wu')
    p3_ids(p)
    vA = 8
    sSEL = sT + 9
    p(f's_cmp_eq_u32 s{sTT}, 0')
    p(f's_cselect_b32 s{sSEL}, s{sSELLO}, s{sSELHI}')
    p(f'v_mul_u32_u24 v9, {16 * 3584}, v{vG}')
    p(f'v_lshl_add_u32 v9, v{vC}, 2, v9')
    p(f's_lshl_b32 s{sT}, s{sKH}, 6')
    p(f'v_add_u32 v{vA}, s{sT}, v9')
    RAW, NB = VW, 7
    TMP = RAW + 16 * NB
    sidx = [0]

    def issue(k):
        R = RAW + 16 * (k % NB)
        for e2 in range(4):
            s = sT + (sidx[0] % 8)
            sidx[0] += 1
            p(f's_mov_b32 s{s}, {(64 * (k >> 1) + 8 * (k & 1) + 2 * e2) * 3584}')
            for o in range(2):
                p(f'buffer_load_dword v{R + 2 * e2 + o}, v{vA}, {sr(S_WG, 4)}, s{s} offen offset:{3584 * o}')
                p(f'buffer_load_dword v{R + 8 + 2 * e2 + o}, v{vA}, {sr(S_WU, 4)}, s{s} offen offset:{3584 * o}')

    for k in range(NB):
        issue(k)
    for k in range(14):
        R = RAW + 16 * (k % NB)
        k0, b0 = w3reg(2 * k)
        k1, b1 = w3reg(2 * k + 1)
        if k0 == 'v':
            G, U = b0, b1
        else:
            G = TMP + 8 * (k & 1)
            U = G + 4
        for d in range(4):
            p(f'v_perm_b32 v{G + d}, v{R + 2 * d + 1}, v{R + 2 * d}, s{sSEL}')
            p(f'v_perm_b32 v{U + d}, v{R + 8 + 2 * d + 1}, v{R + 8 + 2 * d}, s{sSEL}')
        for d in range(4):
            p(f'v_permlane16_swap_b32 v{G + d}, v{U + d}')
        if k0 == 'a':
            for d in range(4):
                p(f'v_accvgpr_write_b32 a{b0 + d}, v{G + d}')
                p(f'v_accvgpr_write_b32 a{b1 + d}, v{U + d}')
        if k + NB < 14:
            issue(k + NB)
    ones, acc = 144, 148
    for d in range(4):
        p(f'v_mov_b32 v{ones + d}, 0x3f803f80')
    for f in range(28):
        p(f'v_mfma_f32_32x32x16_bf16 {vr(acc, 16)}, {w3op(f)}, {vr(ones, 4)}, {"0" if f == 0 else vr(acc, 16)}')
    p(f's_lshl_b32 s{sT}, s{sW}, 7')
    p(f's_add_u32 s{sT}, s{sT}, {L_CS3}')
    p(f'v_lshrrev_b32 v9, 5, v{vLANE}')
    p('v_lshlrev_b32 v9, 4, v9')
    p(f'v_add_u32 v9, s{sT}, v9')
    for a in range(4):
        p(f'ds_write_b128 v9, {vr(acc + 4 * a, 4)} offset:{32 * a}')


def p3_body(p):
    p.comment('---- P3 body')
    ACC = 16
    CS = 48
    BF, NBS = 64, 6
    SG = 88
    ST = 144
    TP = 152
    vSrc, vWr, vRd, vSt, vOut, vT = 8, 9, 10, 11, 12, 13
    p(f's_mul_i32 s{sT}, s{sW}, 7168')
    p(f'v_add_u32 v{vSrc}, s{sT}, v{vL16}')
    p(f'v_add_u32 v{vWr}, {LS}, v{vSrc}')
    p(f'v_add_u32 v14, 4096, v{vSrc}')
    sSRC = sT + 1
    p(f's_mul_i32 s{sSRC}, s{sU}, {16 * 14336}')
    p(f's_add_u32 s{sSRC}, s{sSRC}, {X1_OFF}')
    sS2 = sT + 2

    def gload(s):
        out = [f's_add_u32 s{sS2 + (s & 1)}, s{sSRC}, {s * 28672}']
        for i in range(7):
            a, off = (vSrc, i * 1024) if i < 4 else (14, (i - 4) * 1024)
            out.append(f'buffer_load_dwordx4 {vr(SG + 28 * (s & 1) + 4 * i, 4)}, v{a}, {sr(S_WS, 4)}, s{sS2 + (s & 1)} offen offset:{off} sc1')
        return out

    def lwrite(s):
        return [f'ds_write_b128 v{vWr}, {vr(SG + 28 * (s & 1) + 4 * i, 4)} offset:{28672 * (s & 1) + 1024 * i}' for i in range(7)]

    for x in gload(0) + gload(1):
        p(x)
    p(f's_lshl_b32 s{sT}, s{sU}, 11')
    p(f's_lshl_b32 s{sT + 4}, s{sW}, 9')
    p(f's_add_u32 s{sT}, s{sT}, s{sT + 4}')
    p(f's_add_u32 s{sT}, s{sT}, {ST_OFF}')
    p(f'v_lshlrev_b32 v{vT}, 3, v{vLANE}')
    for gm in range(7):
        if gm:
            p(f's_add_u32 s{sT}, s{sT}, 16384')
        p(f'buffer_load_dwordx2 {vr(TP + 2 * gm, 2)}, v{vT}, {sr(S_WS, 4)}, s{sT} offen sc1')
    p(f'v_and_b32 v{vRd}, 1, v{vG}')
    p(f'v_mul_u32_u24 v{vRd}, 14336, v{vRd}')
    p(f'v_lshrrev_b32 v15, 1, v{vG}')
    p(f'v_lshl_add_u32 v{vRd}, v15, 9, v{vRd}')
    p(f'v_lshl_add_u32 v{vRd}, v{vC}, 4, v{vRd}')
    p(f'v_add_u32 v{vRd}, {LS}, v{vRd}')
    p(f'v_and_b32 v{vOut}, 1, v{vG}')
    p(f'v_mul_u32_u24 v{vOut}, 57344, v{vOut}')
    p(f'v_lshl_add_u32 v{vOut}, v15, 8, v{vOut}')
    p(f'v_lshl_add_u32 v{vOut}, v{vC}, 4, v{vOut}')
    p(f's_lshl_b32 s{sT}, s{sKH}, 10')
    p(f's_lshl_b32 s{sT + 4}, s{sTT}, 9')
    p(f's_add_u32 s{sT}, s{sT}, s{sT + 4}')
    p(f'v_add_u32 v{vOut}, s{sT}, v{vOut}')
    sOUT = sT + 4
    p(f's_mul_i32 s{sOUT}, s{sU}, {16 * 57344}')
    p(f's_add_u32 s{sOUT}, s{sOUT}, {H_OFF}')
    p(f'v_and_b32 v{vSt}, 31, v{vLANE}')
    p(f'v_lshlrev_b32 v{vSt}, 4, v{vSt}')
    p(f'v_add_u32 v{vSt}, {L_SA}, v{vSt}')
    p(f's_lshl_b32 s{sT}, s{sW}, 7')
    p(f's_add_u32 s{sT}, s{sT}, {L_CS3}')
    p('v_lshlrev_b32 v15, 4, v15')
    p(f'v_add_u32 v15, s{sT}, v15')
    for a in range(4):
        p(f'ds_read_b128 {vr(CS + 4 * a, 4)}, v15 offset:{32 * a}')
    for x in lwrite(0):
        p(x)
    for x in gload(2):
        p(x)
    for gm in range(1, 7):
        p(f'v_add_f32 v{TP}, v{TP}, v{TP + 2 * gm}')
        p(f'v_add_f32 v{TP + 1}, v{TP + 1}, v{TP + 2 * gm + 1}')
    finalize_stats(p, TP, TP + 1, TP + 4, TP + 5, TP + 2)
    p(f'v_sub_f32 v{TP + 8}, 0, v{TP + 4}')
    p(f'v_mul_f32 v{TP + 9}, {f32(-LOG2E)}, v{TP + 5}')
    p(f'v_mul_f32 v{TP + 10}, v{TP + 5}, v{TP + 5}')
    p(f'v_mov_b32 v{TP + 11}, 0')
    p(f's_lshl_b32 s{sT}, s{sW}, 10')
    p(f's_add_u32 s{sT}, s{sT}, {L_SA}')
    p(f'v_add_u32 v{vT}, s{sT}, v{vL16}')
    p(f'ds_write_b128 v{vT}, {vr(TP + 8, 4)}')
    barrier(p)

    def bread(s, f):
        gi = 28 * s + f
        k, ss = f >> 1, f & 1
        return f'ds_read_b128 {vr(BF + 4 * (gi % NBS), 4)}, v{vRd} offset:{28672 * (s & 1) + 1024 * k + 256 * ss}'

    def epi(s):
        A = ACC + 16 * (s & 1)
        st = ST + 4 * (s & 1)
        nm, c1, c2 = st, st + 1, st + 2
        o = []
        for i in range(8):
            G, U, e = A + i, A + 8 + i, TP + i
            o += [f'v_fma_f32 v{G}, v{nm}, v{CS + i}, v{G}',
                  f'v_fma_f32 v{U}, v{nm}, v{CS + 8 + i}, v{U}',
                  f'v_mul_f32 v{e}, v{G}, v{c1}']
        for i in range(8):
            G, U, e = A + i, A + 8 + i, TP + i
            o += [f'v_exp_f32 v{e}, v{e}',
                  f'v_mul_f32 v{G}, v{G}, v{U}']
        for i in range(8):
            G, U, e = A + i, A + 8 + i, TP + i
            o += [f'v_add_f32 v{e}, 1.0, v{e}',
                  f'v_mul_f32 v{G}, v{G}, v{c2}']
        for i in range(8):
            e = TP + i
            o += [f'v_rcp_f32 v{e}, v{e}']
        for i in range(8):
            G, e = A + i, TP + i
            o += [f'v_mul_f32 v{G}, v{G}, v{e}']
        for d in range(4):
            o += [f'v_cvt_pk_bf16_f32 v{TP + 8 + d}, v{A + 2 * d}, v{A + 2 * d + 1}']
        o += [f's_add_u32 s{sT + 5}, s{sOUT}, {2 * s * 57344}',
              f'buffer_store_dwordx4 {vr(TP + 8, 4)}, v{vOut}, {sr(S_WS, 4)}, s{sT + 5} offen sc1']
        return o

    LA = NBS - 1
    for f in range(LA):
        p(bread(0, f))
    for s in range(8):
        A = ACC + 16 * (s & 1)
        main = []
        for f in range(28):
            gi = 28 * s + f
            item = [f'v_mfma_f32_32x32x16_bf16 {vr(A, 16)}, {w3op(f)}, {vr(BF + 4 * (gi % NBS), 4)}, {"0" if f == 0 else vr(A, 16)}']
            nf = f + LA
            if nf < 28:
                item = [bread(s, nf)] + item
            elif s < 7:
                if nf == 28:
                    item = ['BARRIER', bread(s + 1, 0)] + item
                else:
                    item = [bread(s + 1, nf - 28)] + item
            main.append(item)
        fill = [f'ds_read_b128 {vr(ST + 4 * (s & 1), 4)}, v{vSt} offset:{512 * s}']
        if s < 7:
            fill += lwrite(s + 1)
        if s + 3 < 8:
            fill += gload(s + 3)
        if s > 0:
            fill += epi(s - 1)
        seq = interleave(main, [[x] for x in fill], 1, 28 - LA - 1)
        for item in seq:
            for x in item:
                if x == 'BARRIER':
                    barrier(p)
                else:
                    p(x)
    for x in epi(7):
        p(x)


def build_multi():
    p = Prog()
    names = []
    hdr = []
    for layer in range(2):
        for ph in (1, 2, 3, 4):
            kn = f'p{ph}l{layer}_kernel'
            names.append(kn)
            hdr.append(f'; @launch kernel={kn} grid=(256,1,1) block=(256,1,1) lds={LDS_BYTES}')
            prologue(p, kn, layer, pre=p1_pre if ph == 1 else None)
            if ph in (2, 4):
                p.flush()
                p(f's_cmp_ge_u32 s{sQ}, 28')
                p(f's_cbranch_scc1 {kn}_end')
            if ph == 1:
                p1_init(p)
                p1_body(p)
            elif ph == 2:
                p2_init(p)
                pk_body(p, 2)
            elif ph == 3:
                p3_init(p)
                p3_body(p)
            else:
                p4_init(p)
                pk_body(p, 4)
            epilogue_end(p, kn)
    txt = '\n'.join(hdr) + '\n.amdgcn_target "amdgcn-amd-amdhsa--gfx950"\n.text\n' + p.text()
    txt += '.section .rodata,"a"\n'
    for kn in names:
        txt += '.p2align 6\n' + kd(kn)
    print('instrs', p.ninstr, 'nop states', p.nops, file=sys.stderr)
    return txt


if __name__ == '__main__':
    out = sys.argv[1] if len(sys.argv) > 1 else f'cdna_kernels/{NAME}.s'
    open(out, 'w').write(build_multi())
```

```python
import sys, struct
from asmgen import Prog, vr, ar, sr

NAME = 'interleave_layers__sliding_local_dilated__swiglu_ffn__prompt'


def ARG(name, default):
    return sys.argv[sys.argv.index(name) + 1] if name in sys.argv else default


TS = '--ts' in sys.argv
FORCE_SLOW = '--slow' in sys.argv

LAYER_STRIDE = 16 << 20
O_OFF, X1_OFF, X2_OFF, ST_OFF, ST2_OFF, H_OFF = 0, 2 << 20, 4 << 20, 6 << 20, 7 << 20, 8 << 20
FL_OFF = 40 << 20
G_OFF = 4096
TS_OFF = FL_OFF + 65536
WT4_OFF = 44 << 20
WT4_SZ = 1605632
WS_BYTES = 64 << 20
LW = 0
L_CS = 86016
LS = L_CS + 1536
L_XCH = LS + 57344
L_SA = L_XCH
L_CON = L_XCH + 10240
L_PM = L_CON + 4096
L_RS = L_PM + 1024
L_PART = L_RS + 1024
LDS_BYTES = L_PART + 512
L_HALO = LS
L_CSP = LS + 16384
assert LDS_BYTES <= 163840

sDBGP = 0
sLAY8, sMODE, sCNT, sTGT, sTS = 3, 4, 5, 6, 7
S_X0, S_WQKV, S_WO, S_WG, S_WU, S_WD, S_OUT, S_WS, S_IN, S_XO = 8, 12, 16, 20, 24, 28, 32, 36, 40, 44
sU, sQ, sW, sJ, sHF, sRHO, sGAM, sLB, sFLO, sMT0 = 48, 49, 50, 51, 52, 53, 54, 55, 56, 57
sRK, sOK, sKS_IN, sKS_OUT = 58, 59, 60, 61
sDG = 62
sDGA = 70
sT = 72
sPTR = 72
S_DBG = 96
sM2 = 100

vLANE, vL16, vG, vC, vLIN, vLOUT, vFL, vX = 0, 1, 2, 3, 4, 5, 6, 7
W3X = 172
LOG2E = 1.4426950408889634
ONES = '0x3f803f80'


def f32(x):
    return '0x%08x' % struct.unpack('<I', struct.pack('<f', x))[0]


_lab = [0]


def newlab(x):
    _lab[0] += 1
    return f'L{x}_{_lab[0]}'


def srd(p, s, lo, hi, nbytes):
    p(f's_mov_b32 s{s}, s{lo}')
    p(f's_and_b32 s{s + 1}, s{hi}, 0xffff')
    p(f's_mov_b32 s{s + 2}, {nbytes}')
    p(f's_mov_b32 s{s + 3}, 0x20000')


def barrier(p, lg=True):
    if lg:
        p.wait(lg=0)
    p('s_barrier')


def mstore(p, lines, mode=sMODE):
    ls, ld = newlab('slow'), newlab('sdone')
    p(f's_cmp_eq_u32 s{mode}, 0')
    p(f's_cbranch_scc0 {ls}')
    n0 = len(p.out)
    t = None
    for x in lines:
        t = p(x)
    body = p.out[n0:]
    p.raw(f'    s_branch {ld}')
    p.label(ls)
    for x in body:
        p.raw(x + (' sc1' if 'buffer_store' in x else ''))
    p.label(ld)
    return t


def stamp(p):
    if not TS:
        return
    p('s_memrealtime s[100:101]')
    p.wait(lg=0)
    p(f'v_mov_b32 v{vX}, s100')
    p(f'buffer_store_dword v{vX}, off, {sr(S_WS, 4)}, s{sTS}')
    p('s_memtime s[100:101]')
    p.wait(lg=0)
    p(f'v_mov_b32 v{vX}, s100')
    p(f'buffer_store_dword v{vX}, off, {sr(S_WS, 4)}, s{sTS} offset:256')
    p(f's_add_u32 s{sTS}, s{sTS}, 4')


def emit(p, x):
    if callable(x):
        return x(p)
    if isinstance(x, tuple):
        return mstore(p, x[1])
    return p(x)


def cost(x):
    if callable(x):
        return getattr(x, 'cost', 8)
    if isinstance(x, tuple):
        return 12 + 4 * len(x[1])
    m = x.split()[0]
    if m in ('v_exp_f32', 'v_rcp_f32', 'v_sqrt_f32', 'v_rsq_f32'):
        return 8
    if m.startswith('ds_write_b128'):
        return 24
    if x.endswith(' lds'):
        return 12
    return 4


def bf16r(dst, src):
    return [f'v_cvt_pk_bf16_f32 v{dst}, v{src}, v{src}', f'v_lshlrev_b32 v{dst}, 16, v{dst}']


def finalize(s1, s2, pm, rstd, tmp):
    o = [f'v_mul_f32 v{pm}, {f32(-1.0 / 448)}, v{s1}',
         f'v_mul_f32 v{tmp}, {f32(1.0 / 448)}, v{s2}',
         f'v_fma_f32 v{tmp}, -v{pm}, v{pm}, v{tmp}',
         f'v_max_f32 v{tmp}, 0, v{tmp}',
         f'v_cvt_pk_bf16_f32 v{pm}, v{pm}, v{pm}']
    o += bf16r(tmp, tmp)
    o += [f'v_add_f32 v{tmp}, {f32(1e-5)}, v{tmp}']
    o += bf16r(tmp, tmp)
    o += [f'v_sqrt_f32 v{tmp}, v{tmp}']
    o += bf16r(tmp, tmp)
    o += [f'v_rcp_f32 v{rstd}, v{tmp}']
    return o


def greduce(regs, tmps, op='v_add_f32'):
    o = []
    for sw in ('v_permlane32_swap_b32', 'v_permlane16_swap_b32'):
        for r, t in zip(regs, tmps):
            o.append(f'v_mov_b32 v{t}, v{r}')
        for r, t in zip(regs, tmps):
            o.append(f'{sw} v{r}, v{t}')
        for r, t in zip(regs, tmps):
            o.append(f'{op} v{r}, v{r}, v{t}')
    return o


def diag(dst, D):
    o = [f'v_cndmask_b32 v{dst}, 0, v{D}, {sr(sDG, 2)}']
    for r in range(1, 4):
        o.append(f'v_cndmask_b32 v{dst}, v{dst}, v{D + r}, {sr(sDG + 2 * r, 2)}')
    return o


def split3(A, B, cs, t0):
    return [f'v_and_b32 v{t0}, 0xffff0000, v{cs}',
            f'v_sub_f32 v{B}, v{cs}, v{t0}',
            f'v_and_b32 v{A}, 0xffff0000, v{B}',
            f'v_sub_f32 v{B}, v{B}, v{A}',
            f'v_lshrrev_b32 v{t0}, 16, v{t0}',
            f'v_or_b32 v{A}, v{A}, v{t0}',
            f'v_lshrrev_b32 v{B}, 16, v{B}']


class Stream:
    def __init__(self, p, budget, wb=2, minage=3, urgent=4):
        self.p, self.budget, self.wb, self.minage, self.urgent = p, budget, wb, minage, urgent
        self.tok, self.when = {}, {}
        self.fired = set()
        self.waited = set()

    def issue(self, r, gap):
        t = None
        for x in r['lines']:
            t = self.p(x)
        self.tok[r['id']] = t
        self.when[r['id']] = gap

    def ok(self, r, i):
        return r['after'] <= i and (r.get('gate') is None or r['gate'] in self.fired)

    def pre(self, rds):
        for q in rds:
            while q and self.ok(q[0], -1):
                self.issue(q.pop(0), -10)

    def drain(self, marker=None):
        if marker is not None and not any(x is marker for _, x in self.fill):
            return
        while self.fill:
            x = self.fill.pop(0)[1]
            emit(self.p, x)
            if x is marker:
                break

    def marker(self, name, fn=None):
        def m(p):
            if fn:
                fn(p)
            self.fired.add(name)
        m.cost = 0 if fn is None else 8
        return m

    def run(self, mf, rds, fill, events=None):
        p = self.p
        events = events or {}
        fill = self.fill = list(fill)
        need = {}
        for i, (_, deps) in enumerate(mf):
            for d in deps:
                need.setdefault(d, i)
        self.pre(rds)
        for i, (txt, deps) in enumerate(mf):
            bud = self.budget
            nd = [d for d in deps if d not in self.waited]
            for d in nd:
                assert d in self.tok, f'dep {d} of mfma {i} not issued'
            if nd:
                ext = list(nd)
                for j in range(i + 1, min(i + self.wb, len(mf))):
                    for d in mf[j][1]:
                        if d in self.tok and i - self.when[d] >= self.minage:
                            ext.append(d)
                n0 = p.ninstr
                for d in sorted(set(ext), key=lambda d: -self.tok[d]):
                    p.wait_tok(self.tok[d])
                    self.waited.add(d)
                bud -= 4 * (p.ninstr - n0)
            p(txt)
            if i in events:
                n0 = p.ninstr
                events[i](p, self)
                bud -= 4 * (p.ninstr - n0)
            for q in rds:
                while q and self.ok(q[0], i):
                    c = sum(cost(x) for x in q[0]['lines'])
                    if c > bud and need.get(q[0]['id'], 1 << 30) - i > self.urgent:
                        break
                    self.issue(q.pop(0), i)
                    bud -= c
            while fill and fill[0][0] <= i and cost(fill[0][1]) <= bud:
                bud -= cost(fill[0][1])
                emit(p, fill.pop(0)[1])
        for q in rds:
            assert not q, f'unissued reads {q[0]}'
        return [x for _, x in fill]


def kd(kname):
    return f""".amdhsa_kernel {kname}
  .amdhsa_next_free_vgpr 512
  .amdhsa_next_free_sgpr 102
  .amdhsa_accum_offset 256
  .amdhsa_group_segment_fixed_size 0
  .amdhsa_kernarg_size 80
  .amdhsa_user_sgpr_count 2
  .amdhsa_user_sgpr_kernarg_segment_ptr 1
  .amdhsa_system_sgpr_workgroup_id_x 1
  .amdhsa_float_denorm_mode_32 3
.end_amdhsa_kernel
"""


def flag_store(p, val):
    p(f's_add_u32 s{sTGT}, s{sLAY8}, {val}')
    p(f'v_mov_b32 v{vX}, s{sTGT}')
    mstore(p, [f'buffer_store_dword v{vX}, off, {sr(S_WS, 4)}, s{sFLO}'])


def poll_loop(p, tgt):
    lp, dn = newlab('wl'), newlab('wd')
    p(f's_mov_b32 s{sCNT}, {1 << 16}')
    p.flush(mem=False)
    p.label(lp)
    p.raw(f'    buffer_load_dword v{vX}, v{vFL}, {sr(S_WS, 4)}, 0 offen sc1')
    p.raw('    s_waitcnt vmcnt(0)')
    p.raw(f'    v_cmp_gt_u32 vcc, {tgt}, v{vX}')
    p.raw(f'    s_cbranch_vccz {dn}')
    p.raw(f'    s_sub_u32 s{sCNT}, s{sCNT}, 1')
    p.raw(f'    s_cbranch_scc0 {lp}')
    p.label(dn)
    p.raw('    s_mov_b64 exec, -1')


def wait_flags(p, val, maskcode):
    lab = newlab('wt')
    p.flush(mem=False)
    p(f's_cmp_eq_u32 s{sW}, 0')
    p(f's_cbranch_scc0 {lab}')
    p(f's_add_u32 s{sTGT}, s{sLAY8}, {val}')
    maskcode(p)
    p('s_mov_b64 exec, s[100:101]')
    poll_loop(p, f's{sTGT}')
    p.label(lab)
    barrier(p, lg=False)
    p.flush(mem=False)
```

```python
from g3a import *

M16 = 'v_mfma_f32_16x16x32_bf16'
M32 = 'v_mfma_f32_32x32x16_bf16'

ACC, HACC, WR, NWS, AF, NAS = 16, 64, 68, 8, 100, 12
PMT = 148
RK, MM, RQ, TA = 160, 164, 168, 170
SREG, PMK, KPV, VF = 116, 132, 136, 100
vT0L, vT1L, vT0H, vT1H, vHWL, vHWH, vHA, vTMP = 8, 9, 10, 11, 12, 13, 14, 15
XA = 112
NW3A = int(ARG('--nw3', 14))


def w3reg(f):
    return ('v', 176 + 4 * f) if f < 20 else ('a', 224 + 4 * (f - 20))


def w3op(f, lo=0, n=4):
    k, b = w3reg(f)
    return vr(b + lo, n) if k == 'v' else ar(b + lo, n)


def prologue(p, kname):
    p.raw(f'.globl {kname}\n.p2align 8\n.type {kname},@function\n{kname}:')
    p('s_cmp_ge_u32 s2, 256')
    p(f's_cbranch_scc1 {kname}_end')
    p(f's_load_dwordx16 {sr(sPTR, 16)}, s[0:1], 0')
    p(f's_load_dwordx4 {sr(sPTR + 16, 4)}, s[0:1], 64')
    p(f's_getpc_b64 {sr(S_IN, 2)}')
    p.label('Lpc')
    p(f's_lshr_b32 s{sQ}, s2, 3')
    p(f's_and_b32 s{S_IN + 1}, s{S_IN + 1}, 0xffff')
    p(f's_mov_b32 s{S_IN + 2}, Lcode_end-Lpc')
    p(f's_mov_b32 s{S_IN + 3}, 0x20000')
    p(f's_and_b32 s{sU}, s{sQ}, 15')
    p(f's_lshl_b32 s{sU}, s{sU}, 12')
    p('v_lshlrev_b32 v1, 4, v0')
    p(f'buffer_load_dwordx4 v[168:171], v1, {sr(S_IN, 4)}, s{sU} offen')
    p(f's_and_b32 s{sU}, s2, 7')
    p('v_lshrrev_b32 v7, 6, v0')
    p(f'v_readfirstlane_b32 s{sW}, v7')
    p(f'v_and_b32 v{vLANE}, 63, v0')
    p(f'v_lshlrev_b32 v{vL16}, 4, v{vLANE}')
    p(f'v_lshrrev_b32 v{vG}, 4, v{vLANE}')
    p(f'v_and_b32 v{vC}, 15, v{vLANE}')
    p(f's_and_b32 s{sJ}, s{sQ}, 15')
    p(f's_lshr_b32 s{sHF}, s{sQ}, 4')
    p(f's_mul_i32 s{sRHO}, s{sQ}, 37')
    p(f's_lshr_b32 s{sRHO}, s{sRHO}, 8')
    p(f's_mul_i32 s{sGAM}, s{sRHO}, 7')
    p(f's_sub_u32 s{sGAM}, s{sQ}, s{sGAM}')
    p(f's_lshl_b32 s{sMT0}, s{sU}, 4')
    p(f's_lshl_b32 s{sCNT}, s{sHF}, 3')
    p(f's_add_u32 s{sMT0}, s{sMT0}, s{sCNT}')
    p(f'v_mul_u32_u24 v8, 896, v{vC}')
    p(f'v_lshl_add_u32 v8, v{vG}, 4, v8')
    p(f's_sub_u32 s{sCNT}, s{sMT0}, 1')
    p(f's_mul_i32 s{sCNT}, s{sCNT}, 14336')
    p(f'v_add_u32 v9, s{sCNT}, v8')
    p(f's_lshl_b32 s{sTGT}, s{sW}, 1')
    p(f's_add_u32 s{sTGT}, s{sTGT}, s{sMT0}')
    p(f's_mul_i32 s{sTGT}, s{sTGT}, 14336')
    p(f's_add_u32 s{sCNT}, s{sTGT}, 14336')
    p(f'v_lshrrev_b32 v11, 2, v{vC}')
    p(f'v_lshl_add_u32 v11, v{vG}, 3, v11')
    p(f'v_and_b32 v12, 1, v{vG}')
    p('v_lshlrev_b32 v12, 1, v12')
    p(f'v_and_b32 v13, 3, v{vC}')
    p('v_xor_b32 v12, v12, v13')
    p('v_lshlrev_b32 v12, 4, v12')
    p('v_mul_u32_u24 v10, 2688, v11')
    p('v_add_u32 v10, v10, v12')
    p(f's_mul_i32 s{sLB}, s{sJ}, 56')
    p(f'v_add_u32 v10, s{sLB}, v10')
    P = sPTR
    srd(p, S_X0, P + 0, P + 1, 2048 * 896)
    for k in range(14):
        for X in range(2):
            p(f'buffer_load_dwordx4 {ar(XA + 8 * k + 4 * X, 4)}, v8, {sr(S_X0, 4)}, s{sCNT if X else sTGT} offen offset:{64 * k}')
    srd(p, S_WQKV, P + 2, P + 3, 448 * 2688)
    for i in range(4):
        p(f's_add_u32 s{sCNT}, s{sW}, {4 * i}')
        if i == 3:
            p(f's_cmp_gt_u32 s{sCNT}, 13')
            p(f's_cselect_b32 s{sLB}, 0x40000000, 0')
            p(f's_min_u32 s{sCNT}, s{sCNT}, 13')
        p(f's_lshl_b32 s{sTGT}, s{sCNT}, 10')
        p(f's_add_u32 m0, s{sTGT}, {L_HALO}')
        p(f's_lshl_b32 s{sCNT}, s{sCNT}, 6')
        p(f'buffer_load_dwordx4 v9, {sr(S_X0, 4)}, s{sCNT} offen lds')
        if i == 3:
            p(f's_add_u32 s{sCNT}, s{sCNT}, s{sLB}')
        p(f'buffer_load_dwordx4 {vr(AF + 4 * i, 4)}, v9, {sr(S_X0, 4)}, s{sCNT} offen')
    w1tok = []
    for i in range(4):
        p(f's_add_u32 s{sCNT}, s{sW}, {4 * i}')
        p(f's_mul_i32 s{sTGT}, s{sCNT}, 6144')
        if i == 3:
            p(f's_cmp_gt_u32 s{sCNT}, 13')
            p(f's_cselect_b32 s{sTGT}, {LS + 24576 - LW}, s{sTGT}')
        p(f's_mul_i32 s{sCNT}, s{sCNT}, {32 * 2688}')
        for m in range(3):
            for h in range(2):
                p(f's_add_u32 m0, s{sTGT}, {LW + (2 * m + h) * 1024}')
                p(f's_add_u32 s{sLB}, s{sCNT}, {4 * h * 2688 + 896 * m}')
                t = p(f'buffer_load_dwordx4 v10, {sr(S_WQKV, 4)}, s{sLB} offen lds')
        w1tok.append(t)
    srd(p, S_WO, P + 4, P + 5, 448 * 896)
    srd(p, S_WG, P + 8, P + 9, 448 * 3584)
    srd(p, S_WU, P + 10, P + 11, 448 * 3584)
    srd(p, S_WD, P + 12, P + 13, 1792 * 896)
    srd(p, S_OUT, P + 14, P + 15, 2048 * 896)
    srd(p, S_WS, P + 18, P + 19, WS_BYTES)
    p(f's_mov_b32 s{sDBGP}, s{P + 16}')
    p(f's_mov_b32 s{sDBGP + 1}, s{P + 17}')
    p(f's_mov_b32 s{sLAY8}, 0')
    p(f's_mov_b32 s{sLB}, 0')
    for r in range(4):
        p(f's_mov_b32 s{sDG + 2 * r}, {(1 | 1 << 20) << r}')
        p(f's_mov_b32 s{sDG + 2 * r + 1}, {hex((1 << 8 | 1 << 28) << r)}')
    p(f's_mov_b32 s{sDGA}, 0x00f0000f')
    p(f's_mov_b32 s{sDGA + 1}, 0xf0000f00')
    p(f's_lshl_b32 s{sCNT}, s{sU}, 7')
    p(f's_add_u32 s{sCNT}, s{sCNT}, {FL_OFF}')
    p(f'v_lshlrev_b32 v{vFL}, 2, v{vLANE}')
    p(f'v_add_u32 v{vFL}, s{sCNT}, v{vFL}')
    p(f'v_add_u32 v7, {G_OFF - 256}, v{vFL}')
    p(f'v_cmp_gt_u32 vcc, 32, v{vLANE}')
    p(f'v_cndmask_b32 v{vFL}, v7, v{vFL}, vcc')
    p(f's_lshl_b32 s{sFLO}, s{sQ}, 2')
    p(f's_add_u32 s{sFLO}, s{sFLO}, s{sCNT}')
    p(f's_cmp_eq_u32 s{sW}, 0')
    p(f's_cselect_b32 s{sFLO}, s{sFLO}, 0x7ff00000')
    if TS:
        p(f's_lshl_b32 s{sTS}, s2, 2')
        p(f's_add_u32 s{sTS}, s{sTS}, s{sW}')
        p(f's_lshr_b32 s{sTS}, s{sTS}, 1')
        p(f's_lshl_b32 s{sTS}, s{sTS}, 9')
        p(f's_add_u32 s{sTS}, s{sTS}, {TS_OFF}')
    p('v_mov_b32 v7, 0')
    p(f'buffer_store_dword v7, off, {sr(S_WS, 4)}, s{sFLO} sc1')
    p(f's_add_u32 s{sCNT}, s{sFLO}, {G_OFF}')
    ztok = p(f'buffer_store_dword v7, off, {sr(S_WS, 4)}, s{sCNT} sc1')
    return w1tok, ztok


def p1_addr():
    o = [f'v_lshrrev_b32 v{vTMP}, 2, v{vC}',
         f'v_lshlrev_b32 v{vT0L}, 8, v{vG}',
         f'v_lshl_add_u32 v{vT0L}, v{vTMP}, 6, v{vT0L}',
         f'v_and_b32 v{vTMP}, 3, v{vC}',
         f'v_lshl_add_u32 v{vT0L}, v{vTMP}, 3, v{vT0L}',
         f'v_and_b32 v{vTMP}, 1, v{vG}',
         f'v_lshl_add_u32 v{vT0L}, v{vTMP}, 5, v{vT0L}',
         f'v_xor_b32 v{vT1L}, 32, v{vT0L}',
         f'v_add_u32 v{vT0H}, {7 * 6144}, v{vT0L}',
         f'v_add_u32 v{vT1H}, {7 * 6144}, v{vT1L}',
         f's_and_b32 s{sT}, s{sW}, 1',
         f's_lshl_b32 s{sT}, s{sT}, 5',
         f'v_xor_b32 v{vHWL}, s{sT}, v{vT0L}',
         f's_lshr_b32 s{sT}, s{sW}, 1',
         f's_lshl_b32 s{sT}, s{sT}, 11',
         f's_add_u32 s{sT}, s{sT}, 2048',
         f'v_add_u32 v{vHWL}, s{sT}, v{vHWL}',
         f'v_add_u32 v{vHWH}, {7 * 6144}, v{vHWL}',
         f'v_add_u32 v{vHA}, {L_HALO}, v{vL16}']
    return o


def w1read(dst, k, n):
    m, t = n >> 1, n & 1
    a = (vT0L, vT1L)[t] if k < 7 else (vT0H, vT1H)[t]
    off = (k % 7) * 6144 + m * 2048
    return [f'ds_read_b64_tr_b16 {vr(dst, 2)}, v{a} offset:{LW + off}',
            f'ds_read_b64_tr_b16 {vr(dst + 2, 2)}, v{a} offset:{LW + off + 1024}']


def bg_loads():
    o = []
    o += ['v_mul_u32_u24 v4, 896, v11', 'v_add_u32 v4, v4, v12',
          f's_lshr_b32 s{sT + 1}, s{sW}, 1', f's_mul_i32 s{sT + 1}, s{sT + 1}, 7',
          f's_mul_i32 s{sT + 2}, s{sRHO}, 14', f's_add_u32 s{sT + 1}, s{sT + 1}, s{sT + 2}',
          f's_mul_i32 s{sT + 1}, s{sT + 1}, {32 * 896}',
          f's_lshl_b32 s{sT + 2}, s{sGAM}, 7', f's_add_u32 s{sT + 1}, s{sT + 1}, s{sT + 2}',
          f's_and_b32 s{sT + 2}, s{sW}, 1', f's_lshl_b32 s{sT + 2}, s{sT + 2}, 6',
          f's_add_u32 s{sT + 1}, s{sT + 1}, s{sT + 2}']
    for i in range(7):
        if i:
            o.append(f's_add_u32 s{sT + 1}, s{sT + 1}, {32 * 896}')
        for h in range(2):
            o.append(f'buffer_load_dwordx4 {ar(8 * i + 4 * h, 4)}, v4, {sr(S_WD, 4)}, s{sT + 1} offen offset:{4 * h * 896}')
    o += [f'v_mul_u32_u24 v4, 896, v{vLANE}', f's_mul_i32 s{sT + 1}, s{sW}, {112 * 896}',
          f's_lshl_b32 s{sT + 2}, s{sGAM}, 7', f's_add_u32 s{sT + 1}, s{sT + 1}, s{sT + 2}',
          f'buffer_load_dword a56, v4, {sr(S_WO, 4)}, s{sT + 1} offen',
          f's_add_u32 s{sT + 1}, s{sT + 1}, {48 * 896}',
          f'buffer_load_dword a57, v4, {sr(S_WO, 4)}, s{sT + 1} offen']
    o += w3_loads(0, NW3A)
    return o


def w3_loads(k0, k1):
    if k0 >= k1:
        return []
    o = [f'v_lshrrev_b32 v5, 1, v{vLANE}', 'v_mul_u32_u24 v5, 3584, v5',
         f'v_and_b32 v{vX}, 1, v{vLANE}', f'v_lshl_add_u32 v5, v{vX}, 4, v5',
         f's_lshl_b32 s{sT + 1}, s{sQ}, 7', f's_lshl_b32 s{sT + 2}, s{sW}, 5',
         f's_add_u32 s{sT + 1}, s{sT + 1}, s{sT + 2}', f's_add_u32 s{sT + 1}, s{sT + 1}, {k0 * 32 * 3584}']
    for k in range(k0, k1):
        if k > k0:
            o.append(f's_add_u32 s{sT + 1}, s{sT + 1}, {32 * 3584}')
        o.append(f'buffer_load_dwordx4 {w3op(2 * k)}, v5, {sr(S_WG, 4)}, s{sT + 1} offen')
        o.append(f'buffer_load_dwordx4 {w3op(2 * k + 1)}, v5, {sr(S_WU, 4)}, s{sT + 1} offen')
    return o


def init0(p, w1tok, ztok):
    p.comment('---- init0')
    BP, BC, PK = 16, 20, 24
    p(f'v_lshlrev_b32 v28, 2, v{vG}')
    p(f'v_sub_u32 v28, v{vC}, v28')
    p(f'v_mov_b32 v29, {f32(-1e30)}')
    p('v_mov_b32 v32, 0xffff')
    p('v_mov_b32 v33, 0xffff0000')
    for r in range(4):
        for (B, add, pk) in ((BC, 0, PK + 2), (BP, 16, PK)):
            p(f'v_add_u32 v30, {add - r}, v28')
            p('v_and_b32 v30, 0xfffffff1, v30')
            p('v_cmp_eq_u32 vcc, 0, v30')
            p(f'v_cndmask_b32 v{B + r}, v29, 0, vcc')
            if r & 1:
                p(f'v_cndmask_b32 v{pk + (r >> 1)}, v{pk + (r >> 1)}, v33, vcc')
            else:
                p(f'v_cndmask_b32 v{pk + (r >> 1)}, 0, v32, vcc')
    p(f'v_add_u32 v31, {L_CON}, v{vL16}')
    p(f'ds_write_b128 v31, {vr(BP, 4)}')
    p(f'ds_write_b128 v31, {vr(BC, 4)} offset:1024')
    p(f'ds_write_b128 v31, {vr(PK, 4)} offset:3072')
    for r in range(4):
        p(f'v_mov_b32 v{36 + r}, v29')
    p(f'ds_write_b128 v31, {vr(36, 4)} offset:2048')
    for r in range(4):
        p(f'v_mov_b32 v{40 + r}, 0')
    p(f'v_add_u32 v31, {L_CS}, v{vL16}')
    p(f'ds_write_b128 v31, {vr(40, 4)}')
    p(f'ds_write_b128 v31, {vr(40, 4)} offset:512')
    ONE = 44
    for r in range(4):
        p(f'v_mov_b32 v{ONE + r}, {ONES}')
    p(f'v_lshlrev_b32 v34, 10, v{vG}')
    p(f'v_lshl_add_u32 v34, v{vC}, 6, v34')
    p(f'v_lshrrev_b32 v35, 2, v{vC}')
    p('v_and_b32 v35, 1, v35')
    p('v_xor_b32 v35, 1, v35')
    p('v_lshl_add_u32 v34, v35, 5, v34')
    p(f'v_add_u32 v34, {LW + 24}, v34')
    bg = bg_loads()
    nset = 12
    for x in bg[:nset]:
        p(x)
    bg = bg[nset:]
    for x in p1_addr():
        p(x)
    SQ, SM = 48, 60
    first = [True] * 3
    seq = []
    for k in range(14):
        for X in range(2):
            seq.append((X, ar(XA + 8 * k + 4 * X, 4)))
    for i in range(4):
        seq.append((2, vr(AF + 4 * i, 4)))
    per = -(-len(bg) // len(seq))
    for X, F in seq:
        cq = '0' if first[X] else vr(SQ + 4 * X, 4)
        cm = '0' if first[X] else vr(SM + 4 * X, 4)
        first[X] = False
        p(f'{M16} {vr(SQ + 4 * X, 4)}, {F}, {F}, {cq}')
        p(f'{M16} {vr(SM + 4 * X, 4)}, {vr(ONE, 4)}, {F}, {cm}')
        for x in bg[:per]:
            p(x)
        bg = bg[per:]
    assert not bg
    srd(p, S_DBG, sDBGP, sDBGP + 1, 256)
    p(f's_getreg_b32 s{sCNT}, hwreg(HW_REG_XCC_ID, 0, 4)')
    p(f's_or_b32 s{sCNT}, s{sCNT}, 0x80')
    p(f'v_mov_b32 v{vX}, s{sCNT}')
    p(f's_lshl_b32 s{sCNT}, s{sU}, 5')
    p(f's_add_u32 s{sCNT}, s{sCNT}, s{sQ}')
    p(f's_cmp_eq_u32 s{sW}, 0')
    p(f's_cselect_b32 s{sCNT}, s{sCNT}, 0x1000')
    D = 72
    for X in range(3):
        for x in diag(D + X, SQ + 4 * X):
            p(x)
    for x in greduce([D, D + 1, D + 2], [75, 76, 77]):
        p(x)
    fa = finalize(SM, D, SM, D, 75)
    fb = finalize(SM + 4, D + 1, SM + 4, D + 1, 76)
    for x, y in zip(fa, fb):
        p(x)
        p(y)
    p(f's_lshl_b32 s{sT}, s{sW}, 7')
    p(f'v_lshl_add_u32 v31, v{vC}, 2, s{sT}')
    p(f'v_add_u32 v31, {L_PM + 64}, v31')
    for X in range(2):
        p(f'ds_write_b32 v31, v{SM + 4 * X} offset:{64 * X}')
        p(f'ds_write_b32 v31, v{D + X} offset:{1024 + 64 * X}')
    p(f'v_mov_b32 v{SM + 9}, v{D + 2}')
    p(f's_lshl_b32 s{sT}, s{sW}, 3')
    p(f'v_lshl_add_u32 v31, v{vC}, 5, s{sT}')
    p(f'v_add_u32 v31, {L_PART}, v31')
    p(f'ds_write_b64 v31, {vr(SM + 8, 2)}')
    CSA = 48
    FR = 76
    skip = newlab('csskip')
    for i in range(4):
        if i == 3:
            p.wait_tok(w1tok[3])
            p.wait_tok(ztok)
            p(f'buffer_store_byte v{vX}, off, {sr(S_DBG, 4)}, s{sCNT} sc1')
            p.flush(mem=False)
            p.wait(lg=0)
            p(f's_cmp_gt_u32 s{sW}, 1')
            p(f's_cbranch_scc1 {skip}')
        p(f's_add_u32 s{sT}, s{sW}, {4 * i}')
        p(f's_mul_i32 s{sT}, s{sT}, 6144')
        p(f'v_add_u32 v31, s{sT}, v34')
        p(f'v_add_u32 v32, s{sT}, v{vT0L}')
        p(f'v_add_u32 v33, s{sT}, v{vT1L}')
        p.wait_tok(w1tok[i])
        p(f'ds_write_b64 v31, {vr(40, 2)}')
        p(f'ds_write_b64 v31, {vr(40, 2)} offset:2048')
        for n in range(6):
            a = 32 + (n & 1)
            off = LW + (n >> 1) * 2048
            p(f'ds_read_b64_tr_b16 {vr(FR + 4 * n, 2)}, v{a} offset:{off}')
            p(f'ds_read_b64_tr_b16 {vr(FR + 4 * n + 2, 2)}, v{a} offset:{off + 1024}')
        for n in range(6):
            p(f'{M16} {vr(CSA + 4 * n, 4)}, {vr(ONE, 4)}, {vr(FR + 4 * n, 4)}, {"0" if i == 0 else vr(CSA + 4 * n, 4)}')
    p.flush(mem=False)
    p.label(skip)
    p(f's_lshl_b32 s{sT}, s{sW}, 2')
    p(f'v_lshl_add_u32 v31, v{vC}, 4, s{sT}')
    p(f'v_add_u32 v31, {L_CSP}, v31')
    for n in range(6):
        p(f'ds_write_b32 v31, v{CSA + 4 * n} offset:{256 * n}')
    barrier(p)


def p1_common_fill(k_free):
    f = []
    g = k_free
    for X in range(3):
        for d in range(1, 4):
            f.append((g('z'), f'v_mov_b32 v{PMT + 4 * X + d}, 0'))
    f += [(g('z'), x) for x in [
        f's_lshl_b32 s{sT}, s{sW}, 7',
        f's_add_u32 s{sT}, s{sT}, {L_PM + 64}',
        f'v_lshl_add_u32 v{TA}, v{vC}, 2, s{sT}',
        f'v_and_b32 v{RK}, 1, v{vC}',
        f'v_lshl_add_u32 v{RK}, v{vG}, 2, v{RK}',
        f'v_add_u32 v{RK + 1}, 2, v{RK}',
        f'v_cmp_gt_u32 vcc, v{RK}, v{vC}',
        f'v_lshl_add_u32 v{MM}, v{RK}, 2, s{sT}',
        f'v_subrev_u32 v{MM + 2}, 64, v{MM}',
        f'v_cndmask_b32 v{MM}, v{MM}, v{MM + 2}, vcc',
        f'v_cmp_gt_u32 vcc, v{RK + 1}, v{vC}',
        f'v_lshl_add_u32 v{MM + 1}, v{RK + 1}, 2, s{sT}',
        f'v_subrev_u32 v{MM + 2}, 64, v{MM + 1}',
        f'v_cndmask_b32 v{MM + 1}, v{MM + 1}, v{MM + 2}, vcc',
        f'v_lshlrev_b32 v{TA + 1}, 2, v{vC}',
        f'v_add_u32 v{TA + 1}, {L_PM}, v{TA + 1}']]
    f += [(g('t'), x) for x in [
        f'ds_read_b32 v{PMT}, v{TA}',
        f'ds_read_b32 v{PMT + 4}, v{TA} offset:64',
        f'ds_read_b32 v{PMT + 8}, v{TA + 1}',
        f'ds_read_b32 v{RQ}, v{TA} offset:1024',
        f'ds_read_b32 v{RQ + 1}, v{TA} offset:1088',
        f'ds_read_b32 v{RK}, v{MM} offset:1024',
        f'ds_read_b32 v{RK + 1}, v{MM + 1} offset:1024',
        f'ds_read_b32 v{RK + 2}, v{MM} offset:1088',
        f'ds_read_b32 v{RK + 3}, v{MM + 1} offset:1088',
        f's_lshl_b32 s{sT}, s{sW}, 1',
        f's_add_u32 s{sT}, s{sT}, s{sMT0}',
        f's_cmp_eq_u32 s{sT}, 0',
        f's_cselect_b32 s{sT + 1}, 2048, 0',
        f'v_add_u32 v{TA}, {L_CON}, v{vL16}',
        f'v_add_u32 v{TA + 1}, s{sT + 1}, v{TA}']]
    f += [(g(9), f'ds_read_b128 {vr(SREG, 4)}, v{TA + 1}'),
          (g(9), f'ds_read_b128 {vr(SREG + 4, 4)}, v{TA} offset:1024'),
          (g(10), f'ds_read_b128 {vr(SREG + 8, 4)}, v{TA}'),
          (g(10), f'ds_read_b128 {vr(SREG + 12, 4)}, v{TA} offset:1024'),
          (g(11), f'ds_read_b128 {vr(PMK, 4)}, v{TA} offset:3072')]
    qs = (28 ** -0.5) * LOG2E
    f += [(g(11), x) for x in [
        f'v_mul_f32 v{RQ}, {f32(qs)}, v{RQ}',
        f'v_mul_f32 v{RQ + 1}, {f32(qs)}, v{RQ + 1}',
        f'v_mul_f32 v{MM}, v{RK}, v{RQ}',
        f'v_mul_f32 v{MM + 1}, v{RK + 1}, v{RQ}',
        f'v_mul_f32 v{MM + 2}, v{RK + 2}, v{RQ + 1}',
        f'v_mul_f32 v{MM + 3}, v{RK + 3}, v{RQ + 1}',
        f'v_lshlrev_b32 v{TA}, 2, v{vLANE}',
        f'v_add_u32 v{TA}, {L_CS}, v{TA}',
        f's_lshl_b32 s{sT}, s{sW}, 8',
        f'v_add_u32 v{TA + 1}, s{sT}, v{TA}']]
    return f


def p1_main(p, layer):
    p.comment(f'---- P1 main layer {layer}')
    hk0 = 0 if layer == 0 else 7
    mf, wq, aq = [], [], []
    kgap = {}
    slot_last = {}
    nslot = [0]

    def wslot(idn, lines_fn, gate=None):
        s = nslot[0] % NWS
        nslot[0] += 1
        wq.append(dict(id=idn, lines=lines_fn(WR + 4 * s), after=slot_last.get(s, -1), gate=gate))
        return s

    for k in range(14):
        kgap[k] = len(mf)
        for n in range(6):
            s = wslot(('w', k, n), lambda d, k=k, n=n: w1read(d, k, n))
            W = vr(WR + 4 * s, 4)
            for X in range(2):
                idx = 2 * k + X
                A = ar(XA + 4 * idx, 4) if layer == 0 else vr(AF + 4 * (idx % NAS), 4)
                acc = vr(ACC + 24 * X + 4 * n, 4)
                c = '0' if k == 0 else acc
                ops = f'{W}, {A}' if n < 4 else f'{A}, {W}'
                deps = [('w', k, n)] + ([('a', idx)] if layer else [])
                mf.append((f'{M16} {acc}, {ops}, {c}', deps))
            slot_last[s] = len(mf) - 1
        hks = [k] if layer == 0 else ([2 * (k - 7), 2 * (k - 7) + 1] if k >= 7 else [])
        for hk in hks:
            def hw(d, hk=hk):
                a = vHWL if hk < 7 else vHWH
                off = LW + (hk % 7) * 6144
                return [f'ds_read_b64_tr_b16 {vr(d, 2)}, v{a} offset:{off}',
                        f'ds_read_b64_tr_b16 {vr(d + 2, 2)}, v{a} offset:{off + 1024}']
            s1 = wslot(('hw', hk), hw)
            s2 = wslot(('ha', hk), lambda d, hk=hk: [f'ds_read_b128 {vr(d, 4)}, v{vHA} offset:{hk * 1024}'],
                       gate='bar' if layer else None)
            mf.append((f'{M16} {vr(HACC, 4)}, {vr(WR + 4 * s1, 4)}, {vr(WR + 4 * s2, 4)}, {"0" if hk == 0 else vr(HACC, 4)}',
                       [('hw', hk), ('ha', hk)]))
            slot_last[s1] = slot_last[s2] = len(mf) - 1
    kgap[14] = len(mf)
    for n in list(range(6)) + ['h']:
        if n == 'h':
            s = wslot(('c', n), lambda d: [f'ds_read_b32 v{d}, v{TA + 1} offset:512'], gate='cs')
            mf.append((f'{M16} {vr(HACC, 4)}, {vr(WR + 4 * s, 4)}, {vr(PMT + 8, 4)}, {vr(HACC, 4)}', [('c', n)]))
        else:
            s = wslot(('c', n), lambda d, n=n: [f'ds_read_b32 v{d}, v{TA} offset:{256 * n}'], gate='cs')
            W = vr(WR + 4 * s, 4)
            for X in (1, 0):
                A = vr(PMT + 4 * X, 4)
                acc = vr(ACC + 24 * X + 4 * n, 4)
                ops = f'{W}, {A}' if n < 4 else f'{A}, {W}'
                mf.append((f'{M16} {acc}, {ops}, {acc}', [('c', n)]))
        slot_last[s] = len(mf) - 1
    st = Stream(p, 8, wb=4, minage=4, urgent=8)
    events = {}
    fill = []
    if layer == 0:
        T = AF + 16
        h = [f'v_lshlrev_b32 v{T}, 5, v{vC}', f'v_add_u32 v{T}, {L_PART}, v{T}',
             f'ds_read_b128 {vr(T + 4, 4)}, v{T}', f'ds_read_b128 {vr(T + 8, 4)}, v{T} offset:16',
             f'v_add_u32 v{T + 1}, {L_CSP}, v{vL16}',
             f'ds_read_b128 {vr(T + 12, 4)}, v{T + 1}',
             f'v_and_b32 v{T + 1}, 0x1ff, v{vL16}', f'v_add_u32 v{T + 1}, {L_CSP + 1024}, v{T + 1}',
             f'ds_read_b128 {vr(T + 16, 4)}, v{T + 1}',
             f'v_lshlrev_b32 v{T}, 2, v{vC}', f'v_add_u32 v{T}, {L_PM}, v{T}',
             f'v_lshl_add_u32 v{T + 1}, v{vG}, 8, v{T}', f'v_add_u32 v{T + 1}, {L_CS - L_PM}, v{T + 1}',
             f'v_and_b32 v{T + 2}, 1, v{vG}', f'v_lshl_add_u32 v{T + 2}, v{T + 2}, 8, v{T}',
             f'v_add_u32 v{T + 2}, {L_CS - L_PM + 1024}, v{T + 2}']
        for i in (6, 8, 10):
            h += [f'v_add_f32 v{T + 4}, v{T + 4}, v{T + i}', f'v_add_f32 v{T + 5}, v{T + 5}, v{T + i + 1}']
        h += finalize(T + 4, T + 5, T + 4, T + 5, T + 6)
        h += [f'ds_write_b32 v{T}, v{T + 4}', f'ds_write_b32 v{T}, v{T + 5} offset:1024']
        for b, ad in ((T + 12, T + 1), (T + 16, T + 2)):
            h += [f'v_add_f32 v{b}, v{b}, v{b + 1}', f'v_add_f32 v{b + 2}, v{b + 2}, v{b + 3}',
                  f'v_add_f32 v{b}, v{b}, v{b + 2}']
            h += split3(b + 1, b + 2, b, b + 3)
            h += [f'ds_write_b32 v{ad}, v{b + 1}', f'ds_write_b32 v{ad}, v{b + 2} offset:64']
        fill += [(0, x) for x in h]
        fill += p1_common_fill(lambda k: 0 if k in ('z', 't') else kgap[k])
    else:
        sA = sT + 4
        p(f's_lshl_b32 s{sA}, s{sW}, 1')
        p(f's_add_u32 s{sA}, s{sA}, s{sMT0}')
        p(f's_mul_i32 s{sA}, s{sA}, 14336')
        p(f's_add_u32 s{sA}, s{sA}, {X2_OFF}')
        for i in range(1, 7):
            p(f's_add_u32 s{sA + i}, s{sA}, {4096 * i}')
        for idx in range(28):
            k, X = idx >> 1, idx & 1
            ph = 14 * X + k
            after = -1 if idx < NAS else kgap[(idx - NAS) // 2] + 11
            aq.append(dict(id=('a', idx), after=after, lines=[
                f'buffer_load_dwordx4 {vr(AF + 4 * (idx % NAS), 4)}, v{vL16}, {sr(S_WS, 4)}, s{sA + (ph >> 2)} offen offset:{(ph & 3) * 1024} sc1']))
    return st, mf, wq, aq, fill, events, kgap


def p1_run(p, layer):
    st, mf, wq, aq, fill, events, kgap = p1_main(p, layer)
    if layer == 1:
        for x in p1_addr():
            p(x)
        first = aq[:4]
        del aq[:4]
        st.pre([first])
        p(f's_sub_u32 s{sT}, s{sMT0}, 1')
        p(f's_mul_i32 s{sT}, s{sT}, 14336')
        p(f's_add_u32 s{sT}, s{sT}, {X2_OFF}')
        p(f's_cmp_eq_u32 s{sMT0}, 0')
        p(f's_cselect_b32 s{sT}, 0x7ff00000, s{sT}')
        for i in range(4):
            p(f's_add_u32 s{sT + 1}, s{sW}, {4 * i}')
            if i == 3:
                p(f's_min_u32 s{sT + 1}, s{sT + 1}, 13')
            p(f's_lshl_b32 s{sT + 1}, s{sT + 1}, 10')
            p(f's_add_u32 m0, s{sT + 1}, {L_HALO}')
            p(f's_add_u32 s{sT + 1}, s{sT + 1}, s{sT}')
            p(f'buffer_load_dwordx4 v{vL16}, {sr(S_WS, 4)}, s{sT + 1} offen sc1 lds')
        SL = PMT
        p(f's_lshl_b32 s{sT}, s{sMT0}, 7')
        p(f's_lshl_b32 s{sT + 1}, s{sW}, 9')
        p(f's_add_u32 s{sT}, s{sT}, s{sT + 1}')
        p(f's_sub_u32 s{sT}, s{sT}, 128')
        p(f'v_lshlrev_b32 v{TA}, 3, v{vLANE}')
        p(f'v_add_u32 v{TA}, s{sT}, v{TA}')
        p(f's_mov_b32 s{sT}, {ST2_OFF}')
        for gm in range(7):
            if gm:
                p(f's_add_u32 s{sT}, s{sT}, 16384')
            p(f'buffer_load_dwordx2 {vr(SL + 2 * gm, 2)}, v{TA}, {sr(S_WS, 4)}, s{sT} offen sc1')
        h = []
        for gm in range(1, 7):
            h += [f'v_add_f32 v{SL}, v{SL}, v{SL + 2 * gm}', f'v_add_f32 v{SL + 1}, v{SL + 1}, v{SL + 2 * gm + 1}']
        h += finalize(SL, SL + 1, SL, SL + 1, SL + 2)
        h += [f's_lshl_b32 s{sT}, s{sW}, 8', f's_add_u32 s{sT}, s{sT}, {L_PM}',
              f'v_lshl_add_u32 v{TA}, v{vLANE}, 2, s{sT}',
              f'ds_write_b32 v{TA}, v{SL}']
        fill += [(kgap[2], x) for x in h]
        wtok = {}

        def lastw(p):
            wtok['t'] = p(f'ds_write_b32 v{TA}, v{SL + 1} offset:1024')
        lastw.cost = 4
        fill.append((0, lastw))
        zf = p1_common_fill(lambda k: 0 if k in ('z', 't') else kgap[k])
        nz = 9 + 16
        fill += zf[:nz]

        def bar(p):
            p.wait_tok(wtok['t'])
            p('s_barrier')
        mb = st.marker('bar', bar)
        fill.append((0, mb))
        fill += zf[nz:]
        events[kgap[6]] = lambda p, st: st.drain(mb)
    mc = st.marker('cs')
    fill.append((0, mc))
    events[kgap[13]] = lambda p, st: st.drain(mc)
    left = st.run(mf, [wq, aq], fill, events)
    assert not left


def p1_tail(p, mid=None):
    p.comment('---- P1 tail')
    A, B = ACC, ACC + 24
    vE, vO = 8, 9

    def cvt(d, s):
        return f'v_cvt_pk_bf16_f32 v{d}, v{s}, v{s + 1}'
    p(f's_lshl_b32 s{sT}, s{sW}, 11')
    p(f's_add_u32 s{sT}, s{sT}, {L_XCH}')
    p(f'v_add_u32 v{vE}, s{sT}, v{vL16}')
    p(f'v_lshrrev_b32 v10, 2, v{vC}')
    p('v_lshlrev_b32 v10, 8, v10')
    p(f'v_lshl_add_u32 v10, v{vG}, 6, v10')
    p(f'v_and_b32 v11, 3, v{vC}')
    p('v_lshl_add_u32 v10, v11, 1, v10')
    p('v_add_u32 v10, 1024, v10')
    p(f's_cmp_lt_u32 s{sW}, 2')
    p(f's_cselect_b64 {sr(sM2, 2)}, -1, 0')
    p(f's_cselect_b32 s{sT}, 2, 16')
    p(f'v_cndmask_b32 v10, v10, v{vL16}, {sr(sM2, 2)}')
    p(f's_and_b32 s{sT + 1}, s{sW}, 1')
    p(f's_lshl_b32 s{sT + 1}, s{sT + 1}, 3')
    p(f's_add_u32 s{sT + 1}, s{sT + 1}, {L_XCH}')
    p(f'v_add_u32 v10, s{sT + 1}, v10')
    p(f'v_add_u32 v11, s{sT}, v10')
    p(f'v_add_u32 v12, s{sT}, v11')
    p(f'v_add_u32 v13, s{sT}, v12')
    for d in range(4):
        p(cvt(B + 8 + d, B + 8 + 2 * d))
    for t in range(2):
        for h in range(2):
            p(cvt(VF + 6 * t + 4 + h, B + 16 + 4 * t + 2 * h))
    p(f'ds_write_b128 v{vE}, {vr(B + 8, 4)} offset:2048')
    p(f'ds_write_b64 v{vE}, {vr(VF + 4, 2)} offset:{2048 + 1024}')
    p(f'ds_write_b64 v{vE}, {vr(VF + 10, 2)} offset:{2048 + 1024 + 8}')
    p(cvt(HACC, HACC))
    p(cvt(HACC + 1, HACC + 2))
    p(f'ds_write_b16 v10, v{HACC}')
    p(f'ds_write_b16_d16_hi v11, v{HACC}')
    p(f'ds_write_b16 v12, v{HACC + 1}')
    p(f'ds_write_b16_d16_hi v13, v{HACC + 1}')
    for d in range(4):
        p(cvt(B + d, B + 2 * d))
    for d in range(4):
        p(cvt(A + 8 + d, A + 8 + 2 * d))
    SA_, SB_ = SREG, SREG + 8
    p(f'{M16} {vr(SB_ + 4, 4)}, {vr(B + 8, 4)}, {vr(B, 4)}, {vr(SB_ + 4, 4)}')
    p(f'{M16} {vr(SB_, 4)}, {vr(A + 8, 4)}, {vr(B, 4)}, {vr(SB_, 4)}')
    for d in range(4):
        p(cvt(A + d, A + 2 * d))
    barrier(p)
    p(f'ds_read_b128 {vr(KPV, 4)}, v{vE}')
    p(f'ds_read_b64 {vr(VF, 2)}, v{vE} offset:1024')
    p(f'ds_read_b64 {vr(VF + 6, 2)}, v{vE} offset:{1024 + 8}')
    p(f'{M16} {vr(SA_ + 4, 4)}, {vr(A + 8, 4)}, {vr(A, 4)}, {vr(SA_ + 4, 4)}')
    for t in range(2):
        for h in range(2):
            p(cvt(VF + 6 * t + 2 + h, A + 16 + 4 * t + 2 * h))
    p(f'{M16} {vr(SA_, 4)}, {vr(KPV, 4)}, {vr(A, 4)}, {vr(SA_, 4)}')
    if mid:
        mid(p)
    seqs = []
    for X, S in ((1, SB_), (0, SA_)):
        T = (B if X else A) + 16
        x0, x1, mx, t0 = T, T + 1, T + 2, T + 3
        PF = T + 4
        O = (B if X else A)
        o = [f'v_max3_f32 v{x0}, v{S}, v{S + 1}, v{S + 4}', f'v_max3_f32 v{x1}, v{S + 2}, v{S + 3}, v{S + 6}',
             f'v_max_f32 v{x0}, v{x0}, v{S + 5}', f'v_max_f32 v{x1}, v{x1}, v{S + 7}',
             f'v_mul_f32 v{x0}, v{x0}, v{MM + 2 * X}', f'v_mul_f32 v{x1}, v{x1}, v{MM + 2 * X + 1}',
             f'v_max_f32 v{mx}, v{x0}, v{x1}']
        o += greduce([mx], [t0], 'v_max_f32')
        o += [f'v_sub_f32 v{x0}, v{x0}, v{mx}', f'v_sub_f32 v{x1}, v{x1}, v{mx}',
              f'v_exp_f32 v{x0}, v{x0}', f'v_exp_f32 v{x1}, v{x1}',
              f'v_add_f32 v{mx}, v{x0}, v{x1}']
        gr = greduce([mx], [t0])
        o += gr[:1] + [f'v_mul_f32 v{x0}, v{x0}, v{RK + 2 * X}'] + gr[1:4] + [f'v_mul_f32 v{x1}, v{x1}, v{RK + 2 * X + 1}'] + gr[4:]
        o += [f'v_rcp_f32 v{mx}, v{mx}',
              f'v_mul_f32 v{x0}, v{x0}, v{mx}', f'v_mul_f32 v{x1}, v{x1}, v{mx}',
              f'v_cvt_pk_bf16_f32 v{x0}, v{x0}, v{x0}', f'v_cvt_pk_bf16_f32 v{x1}, v{x1}, v{x1}',
              f'v_and_b32 v{PF}, v{x0}, v{PMK}', f'v_and_b32 v{PF + 1}, v{x1}, v{PMK + 1}',
              f'v_and_b32 v{PF + 2}, v{x0}, v{PMK + 2}', f'v_and_b32 v{PF + 3}, v{x1}, v{PMK + 3}']
        for t in range(2):
            o.append(f'{M16} {vr(O + 4 * t, 4)}, {vr(VF + 6 * t + 2 * X, 4)}, {vr(PF, 4)}, 0')
        seqs.append(o)
    for x, y in zip(*seqs):
        p(x)
        p(y)
    p(f's_lshl_b32 s{sT}, s{sW}, 1')
    p(f's_add_u32 s{sT}, s{sT}, s{sMT0}')
    p(f's_lshl_b32 s{sT}, s{sT}, 14')
    p(f's_lshl_b32 s{sT + 1}, s{sJ}, 10')
    p(f's_add_u32 s{sT}, s{sT}, s{sT + 1}')
    p(f's_add_u32 s{sT}, s{sT}, s{sLB}')
    p(f's_add_u32 s{sT + 1}, s{sT}, 16384')
    for O in (B, A):
        for d in range(4):
            p(cvt(O + d, O + 2 * d))
    return mstore(p, [f'buffer_store_dwordx4 {vr(B, 4)}, v{vL16}, {sr(S_WS, 4)}, s{sT + 1} offen',
                      f'buffer_store_dwordx4 {vr(A, 4)}, v{vL16}, {sr(S_WS, 4)}, s{sT} offen'])


def verify(p):
    lp, dn = newlab('vf'), newlab('vfd')
    srd(p, S_DBG, sDBGP, sDBGP + 1, 256)
    p(f's_lshl_b32 s{sCNT}, s{sU}, 5')
    p(f'v_lshlrev_b32 v8, 2, v{vLANE}')
    p(f'v_add_u32 v8, s{sCNT}, v8')
    p('v_subrev_u32 v9, 64, v8')
    p('v_and_b32 v9, 0xff, v9')
    p(f'v_cmp_gt_u32 vcc, 8, v{vLANE}')
    p('v_cndmask_b32 v8, v9, v8, vcc')
    p('s_mov_b64 exec, 0xffff')
    p(f's_mov_b32 s{sCNT}, {1 << 16}')
    p.flush(mem=False)
    p.label(lp)
    p.raw(f'    buffer_load_dword v9, v8, {sr(S_DBG, 4)}, 0 offen sc1')
    p.raw('    s_waitcnt vmcnt(0)')
    p.raw('    v_and_b32 v10, 0x80808080, v9')
    p.raw('    v_cmp_ne_u32 vcc, 0x80808080, v10')
    p.raw(f'    s_cbranch_vccz {dn}')
    p.raw(f'    s_sub_u32 s{sCNT}, s{sCNT}, 1')
    p.raw(f'    s_cbranch_scc0 {lp}')
    p.label(dn)
    p.vm = []
    p(f's_getreg_b32 s{sCNT}, hwreg(HW_REG_XCC_ID, 0, 4)')
    p(f's_or_b32 s{sCNT}, s{sCNT}, 0x80')
    p(f's_mul_i32 s{sCNT}, s{sCNT}, 0x01010101')
    p('s_mov_b64 exec, 0xff')
    p(f'v_cmp_ne_u32 vcc, s{sCNT}, v9')
    p('s_mov_b64 exec, -1')
    p(f's_mov_b32 s{sMODE}, vcc_lo')
    if FORCE_SLOW:
        p(f's_mov_b32 s{sMODE}, 1')
```

```python
from g3a import *
from g3b import *


def xperm(dst, tmp, rowmajor):
    o = [f'v_and_b32 v{dst}, 1, v{vG}', f'v_lshrrev_b32 v{tmp}, 1, v{vG}', f'v_lshl_add_u32 v{dst}, v{dst}, 1, v{tmp}']
    if rowmajor:
        o += [f'v_mul_u32_u24 v{tmp}, 896, v{vC}', f'v_lshl_add_u32 v{dst}, v{dst}, 4, v{tmp}']
    else:
        o += [f'v_lshlrev_b32 v{tmp}, 4, v{vC}', f'v_lshl_add_u32 v{dst}, v{dst}, 8, v{tmp}']
    return o


def set_layer(p, layer):
    a, b = (vLIN, vLOUT) if layer == 0 else (vLOUT, vLIN)
    for x in xperm(a, vX, True) + xperm(b, vX, False):
        p(x)
    rm, xf = (S_IN, S_XO) if layer == 0 else (S_XO, S_IN)
    src = S_X0 if layer == 0 else S_OUT
    for i in range(4):
        p(f's_mov_b32 s{rm + i}, s{src + i}')
        p(f's_mov_b32 s{xf + i}, s{S_WS + i}')
    k_rm, k_xf = (sRK, sOK) if layer == 0 else (sOK, sRK)
    s_rm, s_xf = (sKS_IN, sKS_OUT) if layer == 0 else (sKS_OUT, sKS_IN)
    p(f's_lshl_b32 s{k_rm}, s{sGAM}, 7')
    p(f's_mov_b32 s{s_rm}, 64')
    p(f's_lshl_b32 s{k_xf}, s{sGAM}, 11')
    p(f's_add_u32 s{k_xf}, s{k_xf}, {X2_OFF}')
    p(f's_mov_b32 s{s_xf}, 1024')
    p(f's_mov_b32 s{sLAY8}, {8 * layer}')
    p(f's_mov_b32 s{sLB}, {LAYER_STRIDE * layer}')


def w2_dma(p):
    p(f'v_lshrrev_b32 v14, 3, v{vLANE}')
    p(f'v_and_b32 v15, 6, v14')
    p(f'v_and_b32 v{vX}, 7, v{vLANE}')
    p(f'v_xor_b32 v15, v15, v{vX}')
    p('v_mul_u32_u24 v14, 896, v14')
    p('v_lshl_add_u32 v14, v15, 4, v14')
    p(f's_mul_i32 s{sT + 2}, s{sW}, {112 * 896}')
    p(f's_lshl_b32 s{sT + 3}, s{sGAM}, 7')
    p(f's_add_u32 s{sT + 2}, s{sT + 2}, s{sT + 3}')
    p(f's_mul_i32 s{sT + 3}, s{sW}, 14336')
    p(f's_add_u32 m0, s{sT + 3}, {LS}')
    for i in range(14):
        if i:
            p('s_add_u32 m0, m0, 1024')
            p(f's_add_u32 s{sT + 2}, s{sT + 2}, {8 * 896}')
        p(f'buffer_load_dwordx4 v14, {sr(S_WO, 4)}, s{sT + 2} offen lds')


def scratch_addr(p):
    for x in p1_addr()[:8]:
        p(x)
    p(f's_mul_i32 s{sT}, s{sW}, 2560')
    p(f's_add_u32 s{sT}, s{sT}, {L_XCH}')
    p(f'v_add_u32 v8, s{sT}, v8')
    p(f'v_add_u32 v9, s{sT}, v9')
    p(f'v_add_u32 v10, s{sT}, v{vL16}')


def w4p_transpose(p):
    p.comment('---- W4 piece transposition')
    scratch_addr(p)
    p(f's_mul_i32 s{sT}, s{sGAM}, 56')
    p(f's_mul_i32 s{sT + 1}, s{sRHO}, 14')
    p(f's_add_u32 s{sT}, s{sT}, s{sT + 1}')
    p(f's_lshr_b32 s{sT + 1}, s{sW}, 1')
    p(f's_mul_i32 s{sT + 1}, s{sT + 1}, 7')
    p(f's_add_u32 s{sT}, s{sT}, s{sT + 1}')
    p(f's_lshl_b32 s{sT}, s{sT}, 12')
    p(f's_and_b32 s{sT + 1}, s{sW}, 1')
    p(f's_lshl_b32 s{sT + 1}, s{sT + 1}, 11')
    p(f's_add_u32 s{sT}, s{sT}, s{sT + 1}')
    p(f's_mul_i32 s{sT + 1}, s{sU}, {WT4_SZ}')
    p(f's_add_u32 s{sT}, s{sT}, s{sT + 1}')
    p(f's_add_u32 s{sT}, s{sT}, {WT4_OFF}')
    for i in range(7):
        R = 8 * i
        p(f'ds_write_b128 v10, {ar(R, 4)}')
        p(f'ds_write_b128 v10, {ar(R + 4, 4)} offset:1024')
        for t in range(2):
            p(f'ds_read_b64_tr_b16 {ar(R + 4 * t, 2)}, v{8 + t}')
            p(f'ds_read_b64_tr_b16 {ar(R + 4 * t + 2, 2)}, v{8 + t} offset:1024')
    lines = []
    for i in range(7):
        if i:
            lines.append(f's_add_u32 s{sT}, s{sT}, 4096')
        for t in range(2):
            lines.append(f'buffer_store_dwordx4 {ar(8 * i + 4 * t, 4)}, v{vL16}, {sr(S_WS, 4)}, s{sT} offen offset:{1024 * t}')
    mstore(p, lines)


def w3_transpose(p):
    p.comment('---- W3 transposition + colsum')
    p(f's_mul_i32 s{sT}, s{sW}, 2560')
    p(f's_add_u32 s{sT}, s{sT}, {L_XCH}')
    p(f'v_add_u32 v10, s{sT}, v{vL16}')
    p(f'v_and_b32 v8, 1, v{vG}')
    p('v_mul_u32_u24 v8, 1152, v8')
    p(f'v_lshrrev_b32 v9, 1, v{vG}')
    p('v_lshl_add_u32 v8, v9, 8, v8')
    p(f'v_lshrrev_b32 v9, 2, v{vC}')
    p('v_lshl_add_u32 v8, v9, 5, v8')
    p(f'v_and_b32 v9, 1, v{vC}')
    p('v_lshl_add_u32 v8, v9, 4, v8')
    p(f'v_bfe_u32 v9, v{vC}, 1, 1')
    p('v_lshl_add_u32 v8, v9, 3, v8')
    p(f'v_add_u32 v8, s{sT}, v8')
    ONE, CA = 12, 16
    for r in range(4):
        p(f'v_mov_b32 v{ONE + r}, {ONES}')

    def mm(f):
        p(f'{M32} {vr(CA, 16)}, {vr(ONE, 4)}, {w3op(f)}, {"0" if f == 0 else vr(CA, 16)}')
    for k in range(14):
        p(f'ds_write_b128 v10, {w3op(2 * k)}')
        if k:
            mm(2 * k - 2)
        p(f'ds_write_b128 v10, {w3op(2 * k + 1)} offset:1152')
        for ss in range(2):
            for hh in range(2):
                p(f'ds_read_b64_tr_b16 {w3op(2 * k + ss, 2 * hh, 2)}, v8 offset:{(16 * ss + 4 * hh) * 32}')
        if k:
            mm(2 * k - 1)
    mm(26)
    mm(27)
    for x in split3(W3X, W3X + 1, CA, W3X + 2):
        p(x)
    p(f's_mov_b32 s{sM2}, 0')
    p(f's_mov_b32 s{sM2 + 1}, -1')
    p(f'v_cndmask_b32 v{W3X}, v{W3X}, v{W3X + 1}, {sr(sM2, 2)}')
    for r in range(1, 4):
        p(f'v_mov_b32 v{W3X + r}, 0')


def out_pack(p, R, OUT):
    for s in range(2):
        for tt in range(2):
            for h in range(2):
                p(f'v_cvt_pk_bf16_f32 v{OUT + 4 * s + 2 * tt + h}, v{R + 8 * s + 4 * tt + 2 * h}, v{R + 8 * s + 4 * tt + 2 * h + 1}')
    for s in range(2):
        for h in range(2):
            p(f'v_permlane16_swap_b32 v{OUT + 4 * s + h}, v{OUT + 4 * s + 2 + h}')


def res_unpack(RES, R):
    o = []
    for s in range(2):
        for h in range(2):
            o.append(f'v_permlane16_swap_b32 v{RES + 4 * s + h}, v{RES + 4 * s + 2 + h}')
    for d in range(8):
        o += [f'v_lshlrev_b32 v{R + 2 * d}, 16, v{RES + d}', f'v_and_b32 v{R + 2 * d + 1}, 0xffff0000, v{RES + d}']
    return o


def stats_out(p, OUT, ONE, D, sOff, vA, mode=sMODE):
    for s in range(2):
        F = vr(OUT + 4 * s, 4)
        p(f'{M16} {vr(D + 4, 4)}, {F}, {F}, {"0" if s == 0 else vr(D + 4, 4)}')
        p(f'{M16} {vr(D, 4)}, {vr(ONE, 4)}, {F}, {"0" if s == 0 else vr(D, 4)}')
    for x in diag(D + 1, D + 4):
        p(x)
    p(f's_mov_b64 exec, {sr(sDGA, 2)}')
    t = mstore(p, [f'buffer_store_dwordx2 {vr(D, 2)}, v{vA}, {sr(S_WS, 4)}, s{sOff} offen'], mode)
    p('s_mov_b64 exec, -1')
    return t


P2_OF, P2_ACC, P2_WR, P2_NW, P2_RES = 16, 80, 96, 17, 164


def p2_pre(p):
    p.comment('---- P2 pre')
    sMTW = sT + 4
    p(f's_lshl_b32 s{sMTW}, s{sU}, 4')
    p(f's_lshl_b32 s{sT}, s{sRHO}, 2')
    p(f's_add_u32 s{sMTW}, s{sMTW}, s{sT}')
    p(f's_add_u32 s{sMTW}, s{sMTW}, s{sW}')
    p(f's_mul_i32 s{sT}, s{sMTW}, 14336')
    p(f's_add_u32 s{sT}, s{sT}, s{sRK}')
    p(f's_add_u32 s{sT + 1}, s{sT}, s{sKS_IN}')
    p(f'buffer_load_dwordx4 {vr(P2_RES, 4)}, v{vLIN}, {sr(S_IN, 4)}, s{sT} offen sc1')
    p(f'buffer_load_dwordx4 {vr(P2_RES + 4, 4)}, v{vLIN}, {sr(S_IN, 4)}, s{sT + 1} offen sc1')
    T = P2_ACC
    for hh in range(2):
        if hh == 0:
            p(f'v_mov_b32 v{T}, v{vG}')
        else:
            p(f'v_cmp_eq_u32 vcc, 3, v{vG}')
            p(f'v_cndmask_b32 v{T}, v{vG}, 1, vcc')
        p(f'v_lshrrev_b32 v{T + 1}, 2, v{vC}')
        p(f'v_lshl_add_u32 v{T + 2}, v{T}, 2, v{T + 1}')
        p(f'v_lshlrev_b32 v{T + 3}, 7, v{T + 2}')
        p(f'v_bfe_u32 v{T + 2}, v{T + 2}, 1, 2')
        p(f'v_lshl_add_u32 v{T + 3}, v{T + 2}, 5, v{T + 3}')
        p(f'v_and_b32 v{T + 1}, 3, v{vC}')
        p(f'v_lshl_add_u32 v{T + 3}, v{T + 1}, 3, v{T + 3}')
        p(f'v_add_u32 v{8 + 4 * hh}, {LS}, v{T + 3}')
        for t in range(1, 4):
            p(f'v_xor_b32 v{8 + 4 * hh + t}, {32 * t}, v{8 + 4 * hh}')
    assert LS % 128 == 0
    mf, wq, oq = [], [], []
    for hd in range(16):
        for t in range(4):
            f = 4 * hd + t
            d = P2_WR + 4 * (f % P2_NW)
            tp = t ^ (2 * (hd & 1))
            wq.append(dict(id=('w', f), after=f - P2_NW, lines=[
                f'ds_read_b64_tr_b16 {vr(d, 2)}, v{8 + tp} offset:{28 * hd * 128}',
                f'ds_read_b64_tr_b16 {vr(d + 2, 2)}, v{12 + tp} offset:{(28 * hd + 16) * 128}']))
            a = vr(P2_ACC + 4 * t, 4)
            mf.append((f'{M16} {a}, {vr(d, 4)}, {vr(P2_OF + 4 * hd, 4)}, {a}', [('w', f), ('o', hd)]))
    sO = sT + 5
    p(f's_lshl_b32 s{sO}, s{sMTW}, 14')
    p(f's_add_u32 s{sO}, s{sO}, s{sLB}')
    for i in range(1, 4):
        p(f's_add_u32 s{sO + i}, s{sO}, {4096 * i}')
    for hd in range(16):
        oq.append(dict(id=('o', hd), after=-1, lines=[
            f'buffer_load_dwordx4 {vr(P2_OF + 4 * hd, 4)}, v{vL16}, {sr(S_WS, 4)}, s{sO + (hd >> 2)} offen offset:{(hd & 3) * 1024} sc1']))
    st = Stream(p, 8, wb=4, minage=4, urgent=8)
    st.pre([wq])
    for x in res_unpack(P2_RES, P2_ACC):
        p(x)
    return st, mf, wq, oq


def p2_body(p, state):
    p.comment('---- P2 body')
    st, mf, wq, oq = state
    sMTW = sT + 4
    ONE, vA, vB = P2_RES, P2_RES + 4, P2_RES + 5
    st.pre([oq])
    pre = [f'v_mov_b32 v{ONE + r}, {ONES}' for r in range(4)]
    pre += xperm(vA, vX, False)
    pre += [f'v_lshlrev_b32 v{vB}, 3, v{vC}',
            f's_mul_i32 s{sT}, s{sMTW}, 14336', f's_lshl_b32 s{sT + 1}, s{sGAM}, 11', f's_add_u32 s{sT}, s{sT}, s{sT + 1}',
            f's_add_u32 s{sT}, s{sT}, s{sLB}', f's_add_u32 s{sT}, s{sT}, {X1_OFF}',
            f's_lshl_b32 s{sT + 1}, s{sMTW}, 7', f's_lshl_b32 s{sT + 2}, s{sGAM}, 14', f's_add_u32 s{sT + 1}, s{sT + 1}, s{sT + 2}',
            f's_add_u32 s{sT + 1}, s{sT + 1}, s{sLB}', f's_add_u32 s{sT + 1}, s{sT + 1}, {ST_OFF}']
    for x in pre:
        p(x)
    st.run(mf, [wq], [])
    OUT, D = P2_OF, P2_OF + 8
    out_pack(p, P2_ACC, OUT)
    mstore(p, [f'buffer_store_dwordx4 {vr(OUT, 4)}, v{vA}, {sr(S_WS, 4)}, s{sT} offen',
               f'buffer_store_dwordx4 {vr(OUT + 4, 4)}, v{vA}, {sr(S_WS, 4)}, s{sT} offen offset:1024'])
    return stats_out(p, OUT, ONE, D, sT + 1, vB)


def p3_body(p, w4load):
    p.comment('---- P3 body')
    A3, BF, NBS, ST3, TP, SL = 16, 48, 12, 96, 104, 116
    vRd, vSt, vOut, vT = 8, 9, 10, 11
    sX = sT
    sH = sT + 4
    sQn = sT + 8
    sWA, sWB, sS, sO = sT + 12, sT + 13, sT + 14, sT + 15
    sW4 = sT + 16
    p(f's_lshr_b32 s{sS}, s{sW}, 1')
    p(f's_mul_i32 s{sS}, s{sS}, 14336')
    p(f's_and_b32 s{sO}, s{sW}, 1')
    p(f's_lshl_b32 s{sWA}, s{sO}, 12')
    p(f's_add_u32 s{sWA}, s{sWA}, s{sS}')
    p(f's_mul_i32 s{sWB}, s{sO}, 3072')
    p(f's_add_u32 s{sWB}, s{sWB}, s{sS}')
    p(f's_add_u32 s{sWB}, s{sWB}, 8192')
    p(f's_mul_i32 s{sS}, s{sU}, {16 * 14336}')
    p(f's_add_u32 s{sS}, s{sS}, s{sLB}')
    p(f's_add_u32 s{sS}, s{sS}, {X1_OFF}')
    p(f's_lshr_b32 s{sO}, s{sGAM}, 1')
    for i in range(4):
        p(f's_sub_u32 s{sQn + i}, s{sO}, {i}')
        p(f's_and_b32 s{sQn + i}, s{sQn + i}, 3')
        p(f's_mul_i32 s{sX + i}, s{sQn + i}, 57344')
        p(f's_add_u32 s{sX + i}, s{sX + i}, s{sS}')

    def dma(s, part):
        sw, n = (sWA, 4) if part == 0 else (sWB, 3)
        o = [f's_add_u32 s{sS}, s{sX + (s >> 1)}, s{sw}']
        if s & 1:
            o.append(f's_add_u32 s{sS}, s{sS}, 28672')
        o.append(f's_add_u32 m0, s{sw}, {LS + 28672 * (s & 1)}')
        for i in range(n):
            o.append(f'buffer_load_dwordx4 v{vL16}, {sr(S_WS, 4)}, s{sS} offen offset:{1024 * i} sc1 lds')
        return o
    dtok = {}

    def dma_now(s, part):
        for x in dma(s, part):
            dtok[(s, part)] = p(x)
    dma_now(0, 0)
    dma_now(0, 1)
    p(f's_lshl_b32 s{sS}, s{sU}, 11')
    p(f's_lshl_b32 s{sO}, s{sW}, 9')
    p(f's_add_u32 s{sS}, s{sS}, s{sO}')
    p(f's_add_u32 s{sS}, s{sS}, s{sLB}')
    p(f's_add_u32 s{sS}, s{sS}, {ST_OFF}')
    p(f'v_lshlrev_b32 v{vT}, 3, v{vLANE}')
    for gm in range(7):
        if gm:
            p(f's_add_u32 s{sS}, s{sS}, 16384')
        p(f'buffer_load_dwordx2 {vr(SL + 2 * gm, 2)}, v{vT}, {sr(S_WS, 4)}, s{sS} offen sc1')
    dma_now(1, 0)
    dma_now(1, 1)
    p(f'v_and_b32 v{vT}, 1, v{vG}')
    p(f'v_lshrrev_b32 v{vSt}, 1, v{vG}')
    p(f'v_lshlrev_b32 v{vRd}, 4, v{vC}')
    p(f'v_lshl_add_u32 v{vRd}, v{vSt}, 8, v{vRd}')
    p(f'v_mul_u32_u24 v{vOut}, 57344, v{vT}')
    p(f'v_add_u32 v{vOut}, v{vOut}, v{vRd}')
    p(f'v_mul_u32_u24 v{vT}, 14336, v{vT}')
    p(f'v_add_u32 v{vRd}, v{vRd}, v{vT}')
    p(f'v_add_u32 v{vRd}, {LS}, v{vRd}')
    p(f's_lshl_b32 s{sS}, s{sQ}, 11')
    p(f's_lshl_b32 s{sO}, s{sW}, 9')
    p(f's_add_u32 s{sS}, s{sS}, s{sO}')
    p(f'v_add_u32 v{vOut}, s{sS}, v{vOut}')
    p(f's_mul_i32 s{sS}, s{sU}, {16 * 57344}')
    p(f's_add_u32 s{sS}, s{sS}, s{sLB}')
    p(f's_add_u32 s{sS}, s{sS}, {H_OFF}')
    for i in range(4):
        p(f's_mul_i32 s{sH + i}, s{sQn + i}, {4 * 57344}')
        p(f's_add_u32 s{sH + i}, s{sH + i}, s{sS}')
        p(f's_lshl_b32 s{sQn + i}, s{sQn + i}, 10')
        p(f's_add_u32 s{sQn + i}, s{sQn + i}, {L_SA}')
    for i in range(2):
        p(f'v_mov_b32 v{ST3 + 4 * i + 2}, 0')
        p(f'v_mov_b32 v{ST3 + 4 * i + 3}, 0')
    p(f'v_and_b32 v12, 0x1f0, v{vL16}')

    def epi(s):
        A = A3 + 16 * (s & 1)
        c1 = ST3 + 4 * (s & 1) + 1
        o = []
        for i in range(8):
            o += [f'v_mul_f32 v{TP + i}, v{A + i}, v{c1}']
        for i in range(8):
            o += [f'v_exp_f32 v{TP + i}, v{TP + i}', f'v_mul_f32 v{A + i}, v{A + i}, v{A + 8 + i}']
        for i in range(8):
            o += [f'v_add_f32 v{TP + i}, 1.0, v{TP + i}']
            if i:
                o += [f'v_rcp_f32 v{TP + i - 1}, v{TP + i - 1}']
        o += [f'v_rcp_f32 v{TP + 7}, v{TP + 7}']
        for i in range(8):
            o += [f'v_mul_f32 v{A + i}, v{A + i}, v{TP + i}']
        for d in range(4):
            o += [f'v_cvt_pk_bf16_f32 v{TP + 8 + d}, v{A + 2 * d}, v{A + 2 * d + 1}']
        o += [f's_add_u32 s{sO}, s{sH + (s >> 1)}, {(s & 1) * 2 * 57344}']

        def st_(p, s=s):
            htok[s] = mstore(p, [f'buffer_store_dwordx4 {vr(TP + 8, 4)}, v{vOut}, {sr(S_WS, 4)}, s{sO} offen'])
        st_.cost = 16
        o.append(st_)
        return o
    htok = {}
    mf, rq = [], []
    for s in range(8):
        A = vr(A3 + 16 * (s & 1), 16)
        for f in range(28):
            gi = 28 * s + f
            prev = gi - NBS
            after = -1 if prev < 0 else 29 * (prev // 28) + prev % 28
            d = BF + 4 * (gi % NBS)
            rq.append(dict(id=gi, after=after, gate=(s, 0 if f < 16 else 1), lines=[
                f'ds_read_b128 {vr(d, 4)}, v{vRd} offset:{28672 * (s & 1) + 512 * f}']))
            mf.append((f'{M32} {A}, {w3op(f)}, {vr(d, 4)}, {"0" if f == 0 else A}', [gi]))
        mf.append((f'{M32} {A}, {vr(W3X, 4)}, {vr(ST3 + 4 * (s & 1), 4)}, {A}', []))
    st = Stream(p, 24, wb=3, minage=3, urgent=5)
    events = {}
    fill = []
    h = []
    for gm in range(1, 7):
        h += [f'v_add_f32 v{SL}, v{SL}, v{SL + 2 * gm}', f'v_add_f32 v{SL + 1}, v{SL + 1}, v{SL + 2 * gm + 1}']
    h += finalize(SL, SL + 1, SL, SL + 2, SL + 3)
    h += [f'v_mul_f32 v{SL + 1}, {f32(-LOG2E)}, v{SL + 2}', f'v_and_b32 v{SL + 1}, 0xffffff7f, v{SL + 1}',
          f'v_mul_f32 v{SL + 2}, v{SL + 2}, v{SL + 2}',
          f's_lshl_b32 s{sO}, s{sW}, 10', f's_add_u32 s{sO}, s{sO}, {L_SA}', f'v_add_u32 v{vT}, s{sO}, v{vL16}',
          f'ds_write_b128 v{vT}, {vr(SL, 4)}']
    fill += [(1, x) for x in h]
    mstat = st.marker('stat')
    fill.append((0, mstat))
    GB1, GB2 = int(ARG('--gb1', 8)), int(ARG('--gb2', 21))

    def mkbar(s, part):
        def ev(p, st):
            if (s, part) == (1, 0):
                st.drain(mstat)
            if s < 8:
                assert (s, part) in dtok, (s, part)
                p.wait_tok(dtok[(s, part)])
                assert rq[0]['gate'] == (s, part), (rq[0]['gate'], s, part)
            fl = None
            if part == 0 and s in (4, 6, 8):
                p.wait_tok(htok[s - 3])
                fl = 3 + (s - 4) // 2
            ps, pp = (s, 0) if part == 1 else (s - 1, 1)
            barrier(p, lg=s < 8)
            st.fired.add((s, part))
            if part == 0:
                p(f'v_add_u32 v{vSt}, s{sQn + ((s - 1) >> 1)}, v12')
                p(f'ds_read_b64 {vr(ST3 + 4 * ((s - 1) & 1), 2)}, v{vSt} offset:{512 * ((s - 1) & 1)}')
            ins = []
            if fl is not None:
                def fs(p, fl=fl):
                    flag_store(p, fl)
                fs.cost = 20
                ins.append((0, fs))
            if ps + 2 < 8:
                dl = dma(ps + 2, pp)
                for x in dl[:-1]:
                    ins.append((0, x))

                def last(p, x=dl[-1], key=(ps + 2, pp)):
                    dtok[key] = p(x)
                last.cost = 12
                ins.append((0, last))
            st.fill[0:0] = ins
        return ev
    for s in range(8):
        events[29 * s + GB1] = mkbar(s, 1)
        events[29 * s + GB2] = mkbar(s + 1, 0)
        if s > 0:
            fill += [(29 * s + 1, x) for x in epi(s - 1)]
            if w4load:
                fill += [(29 * s + 1, x) for x in w4load(s - 1, sW4)]
            mk = st.marker(('e', s))
            fill.append((0, mk))
            events[29 * s + 27] = (lambda p, st, mk=mk: st.drain(mk))
        if '--p3ts' in sys.argv:
            events[29 * s] = lambda p, st: stamp(p)
    p.wait_tok(dtok[(0, 0)])
    barrier(p)
    st.fired.add((0, 0))
    left = st.run(mf, [rq], fill, events)
    assert not left
    for x in epi(7):
        emit(p, x)
    return htok[7]


def w4_setup(sW4):
    return [f's_mul_i32 s{sW4}, s{sU}, {WT4_SZ}', f's_add_u32 s{sW4}, s{sW4}, {WT4_OFF}',
            f's_mul_i32 s{sW4 + 1}, s{sGAM}, 56', f's_mul_i32 s{sW4 + 2}, s{sW}, 14',
            f's_add_u32 s{sW4 + 1}, s{sW4 + 1}, s{sW4 + 2}', f's_lshl_b32 s{sW4 + 1}, s{sW4 + 1}, 12',
            f's_add_u32 s{sW4}, s{sW4}, s{sW4 + 1}', f's_lshl_b32 s{sW4 + 1}, s{sRHO}, 1']


def w4_slot(sg, sW4):
    o = []
    if sg == 0:
        o += w4_setup(sW4)
    else:
        o += [f's_add_u32 s{sW4 + 1}, s{sW4 + 1}, 1', f's_cmp_eq_u32 s{sW4 + 1}, 7', f's_cselect_b32 s{sW4 + 1}, 0, s{sW4 + 1}']
    o += [f's_lshl_b32 s{sW4 + 2}, s{sW4 + 1}, 13', f's_add_u32 s{sW4 + 2}, s{sW4 + 2}, s{sW4}']
    for kk in range(2):
        if kk:
            o.append(f's_add_u32 s{sW4 + 2}, s{sW4 + 2}, 4096')
        for t in range(4):
            o.append(f'buffer_load_dwordx4 {ar(((2 * sg + kk) * 4 + t) * 4, 4)}, v{vL16}, {sr(S_WS, 4)}, s{sW4 + 2} offen offset:{1024 * t} sc1')
    return o


def w4_load_block(p):
    for sg in range(7):
        for x in w4_slot(sg, sT + 16):
            p(x)


sPM = sT + 14


def p4_body(p, kend):
    p.comment('---- P4 body')
    FR, NFS, A4 = 16, 18, 88
    RES, RSF = 152, 16
    C2, vTg = 160, 161
    vB = [8, 9, 10, 11]
    vRed, vT = 12, 13
    sSL = sT
    sLT = sT + 7
    sMTW, sA, sB = sT + 10, sT + 11, sT + 12
    sMODE2 = sT + 13
    p(f'v_mul_u32_u24 v{vT}, 37, v{vLANE}')
    p(f'v_lshrrev_b32 v{vT}, 8, v{vT}')
    p(f'v_mul_u32_u24 v{vT}, 7, v{vT}')
    p(f'v_sub_u32 v{vT}, v{vLANE}, v{vT}')
    p(f'v_lshrrev_b32 v{vT}, 1, v{vT}')
    p(f'v_subrev_u32 v{vT}, s{sRHO}, v{vT}')
    p(f'v_and_b32 v{vT}, 3, v{vT}')
    p(f's_add_u32 s{sA}, s{sLAY8}, 3')
    p(f'v_add_u32 v{vTg}, s{sA}, v{vT}')
    p(f's_mul_i32 s{sA}, s{sW}, 7')
    p(f's_lshl_b32 s{sPM}, 0x7f, s{sA}')
    p(f's_mov_b32 s{sPM + 1}, 0')
    p(f'v_cmp_ne_u32 vcc, 3, v{vT}')
    p(f's_and_b64 exec, vcc, {sr(sPM, 2)}')
    poll_loop(p, f'v{vTg}')
    p.vm = []
    p(f's_mul_i32 s{sB}, s{sW}, 14336')
    p(f's_add_u32 s{sB}, s{sB}, s{sLB}')
    p(f's_add_u32 s{sB}, s{sB}, {H_OFF}')
    p(f's_lshl_b32 s{sA}, s{sRHO}, 1')
    for sg in range(7):
        if sg:
            p(f's_add_u32 s{sA}, s{sA}, 1')
            p(f's_cmp_eq_u32 s{sA}, 7')
            p(f's_cselect_b32 s{sA}, 0, s{sA}')
        p(f's_lshl_b32 s{sSL + sg}, s{sA}, 11')
        p(f's_add_u32 s{sSL + sg}, s{sSL + sg}, s{sB}')
    p(f's_lshl_b32 s{sMTW}, s{sU}, 4')
    p(f's_lshl_b32 s{sA}, s{sRHO}, 2')
    p(f's_add_u32 s{sMTW}, s{sMTW}, s{sA}')
    for i in range(4):
        p(f's_add_u32 s{sA}, s{sW}, {i + 1}')
        p(f's_and_b32 s{sA}, s{sA}, 3')
        if i < 3:
            p(f's_mul_i32 s{sLT + i}, s{sA}, 12288')
            p(f's_add_u32 s{sLT + i}, s{sLT + i}, {LS + 4096 * i}')
        p(f's_add_u32 s{sA}, s{sA}, s{sMTW}')
        p(f's_mul_i32 s{sA}, s{sA}, 57344')
        p(f'v_add_u32 v{vB[i]}, s{sA}, v{vL16}')
    p(f's_add_u32 s{sMTW}, s{sMTW}, s{sW}')
    order = [(k, i) for k in range(10) for i in range(4)] + [(k, i) for i in range(4) for k in range(10, 14)]
    mf, fq = [], []
    for f, (k, i) in enumerate(order):
        d = FR + 4 * (f % NFS)
        fq.append(dict(id=f, after=-1 if f < NFS else 4 * (f - NFS) + 3, gate='late' if k >= 10 else None, lines=[
            f'buffer_load_dwordx4 {vr(d, 4)}, v{vB[i]}, {sr(S_WS, 4)}, s{sSL + (k >> 1)} offen offset:{(k & 1) * 1024} sc1']))
        for t in range(4):
            a = vr(A4 + 16 * i + 4 * t, 4)
            mf.append((f'{M16} {a}, {ar((k * 4 + t) * 4, 4)}, {vr(d, 4)}, {"0" if k == 0 else a}', [f]))
    st = Stream(p, 8, wb=1, minage=0, urgent=1 << 20)
    st.pre([fq])
    return st, mf, fq, dict(FR=FR, A4=A4, RES=RES, C2=C2, vTg=vTg, vRed=vRed, vT=vT, sLT=sLT, sMTW=sMTW, sA=sA, sB=sB,
                            sMODE2=sMODE2, NFS=NFS)


def p4_run(p, state, kend):
    st, mf, fq, L = state
    FR, A4, RES, C2, vTg, vRed, vT = (L[k] for k in ('FR', 'A4', 'RES', 'C2', 'vTg', 'vRed', 'vT'))
    sLT, sMTW, sA, sB, sMODE2, NFS = (L[k] for k in ('sLT', 'sMTW', 'sA', 'sB', 'sMODE2', 'NFS'))
    ONE, vS = 164, 168
    fill = [(0, x) for x in xperm(vT, vX, False) + [
        f's_mul_i32 s{sA}, s{sMTW}, 14336', f's_lshl_b32 s{sB}, s{sGAM}, 11', f's_add_u32 s{sB}, s{sB}, s{sA}',
        f's_add_u32 s{sB}, s{sB}, s{sLB}', f's_add_u32 s{sB}, s{sB}, {X1_OFF}',
        f'buffer_load_dwordx4 {vr(RES, 4)}, v{vT}, {sr(S_WS, 4)}, s{sB} offen sc1',
        f'buffer_load_dwordx4 {vr(RES + 4, 4)}, v{vT}, {sr(S_WS, 4)}, s{sB} offen offset:1024 sc1',
        f's_and_b32 s{sB}, s{sMTW}, 15', f's_lshl_b32 s{sB}, s{sB}, 8', f's_add_u32 s{sB}, s{sB}, {L_SA + 8}',
        f'v_lshl_add_u32 v{vT}, v{vC}, 4, s{sB}', f'ds_read_b32 v{C2}, v{vT}',
        f's_and_b32 s{sB}, s{sMTW}, 15', f's_cmp_eq_u32 s{sB}, 15', f's_cselect_b32 s{sMODE2}, 1, s{sMODE}',
        f's_add_u32 s{sA}, s{sA}, s{sOK}', f's_add_u32 s{sB}, s{sA}, s{sKS_OUT}',
        f'v_lshlrev_b32 v{vS}, 3, v{vC}'] + [f'v_mov_b32 v{ONE + r}, {ONES}' for r in range(4)]]
    events = {}
    glate = 4 * (40 - NFS) + 3

    def late(p, st):
        p(f's_mov_b64 exec, {sr(sPM, 2)}')
        poll_loop(p, f'v{vTg}')
        p.vm = []
        st.fired.add('late')
    events[glate] = late
    R0, TB = FR, FR + 16

    def wr(i):
        def ev(p, st):
            p(f'v_add_u32 v{vRed}, s{sLT + i}, v{vL16}')
            for t in range(4):
                p(f'ds_write_b128 v{vRed}, {vr(A4 + 16 * i + 4 * t, 4)} offset:{1024 * t}')
            if i == 2:
                barrier(p)
                p(f's_mul_i32 s{sLT}, s{sW}, 12288')
                p(f's_add_u32 s{sLT}, s{sLT}, {LS}')
                p(f'v_add_u32 v{vRed}, s{sLT}, v{vL16}')
                for sl in range(3):
                    for t in range(4):
                        p(f'ds_read_b128 {vr(A4 + 16 * sl + 4 * t, 4)}, v{vRed} offset:{4096 * sl + 1024 * t}')
                f2 = []
                for x in range(16):
                    f2.append(f'v_add_f32 v{A4 + x}, v{A4 + x}, v{A4 + 16 + x}')
                for x in range(16):
                    f2.append(f'v_add_f32 v{A4 + x}, v{A4 + x}, v{A4 + 32 + x}')
                f2 += res_unpack(RES, A4 + 16)
                st.fill += [(0, x) for x in f2]
        return ev
    for i in range(3):
        events[160 + 16 * i + 15 + 2] = wr(i)
    left = st.run(mf, [fq], fill, events)
    for x in left:
        emit(p, x)
    for x in range(16):
        p(f'v_add_f32 v{A4 + x}, v{A4 + x}, v{A4 + 48 + x}')
    for x in range(16):
        p(f'v_fma_f32 v{A4 + x}, v{A4 + x}, v{C2}, v{A4 + 16 + x}')
    OUT, D = A4 + 32, A4 + 40
    out_pack(p, A4, OUT)
    mstore(p, [f'buffer_store_dwordx4 {vr(OUT, 4)}, v{vLOUT}, {sr(S_XO, 4)}, s{sA} offen',
               f'buffer_store_dwordx4 {vr(OUT + 4, 4)}, v{vLOUT}, {sr(S_XO, 4)}, s{sB} offen'], sMODE2)
    p.flush(mem=False)
    p(f's_cmp_eq_u32 s{sLAY8}, 0')
    p(f's_cbranch_scc0 {kend}')
    p(f's_lshl_b32 s{sA}, s{sMTW}, 7')
    p(f's_lshl_b32 s{sB}, s{sGAM}, 14')
    p(f's_add_u32 s{sA}, s{sA}, s{sB}')
    p(f's_add_u32 s{sA}, s{sA}, {ST2_OFF}')
    stats_out(p, OUT, ONE, D, sA, vS, sMODE2)
```

```python
from g3a import *
from g3b import *
from g3c import *


def publish(p, val, tok=None, halo=False):
    if tok is None:
        p.wait(vm=0)
    else:
        p.wait_tok(tok)
    barrier(p)
    flag_store(p, val)
    if halo:
        p(f's_add_u32 s{sCNT}, s{sFLO}, {G_OFF}')
        p(f'buffer_store_dword v{vX}, off, {sr(S_WS, 4)}, s{sCNT} sc1')


def build():
    p = Prog()
    kn = NAME + '_kernel'
    kend = kn + '_end'
    w1tok, ztok = prologue(p, kn)
    stamp(p)
    init0(p, w1tok, ztok)
    stamp(p)
    p1_run(p, 0)
    verify(p)
    set_layer(p, 0)
    p.flush()
    p.label('Ltail')
    stamp(p)
    otok = p1_tail(p, mid=w2_dma)
    publish(p, 1)
    stamp(p)
    p.flush(mem=False)
    p(f's_cmp_ge_u32 s{sQ}, 28')
    p('s_cbranch_scc1 Lidle')
    p(f's_cmp_eq_u32 s{sLAY8}, 0')
    p('s_cbranch_scc0 Lno4p')
    w4p_transpose(p)
    p.flush(mem=False)
    p.wait(lg=0)
    p.label('Lno4p')
    p.vm = []
    st2 = p2_pre(p)

    def m2(p):
        p(f's_lshr_b32 s100, s{sRHO}, 1')
        p('s_lshl_b32 s100, s100, 4')
        p('s_lshl_b32 s100, 0xffff, s100')
        p('s_mov_b32 s101, 0')
    stamp(p)
    wait_flags(p, 1, m2)
    stamp(p)
    p2_body(p, st2)
    publish(p, 2)
    stamp(p)
    p.flush(mem=False)
    p(f's_cmp_eq_u32 s{sLAY8}, 0')
    p('s_cbranch_scc0 Lno3t')
    w3_transpose(p)
    p.flush(mem=False)
    p.wait(lg=0)
    p.label('Lno3t')

    def m3(p):
        p('s_mov_b32 s100, 0x0fffffff')
        p('s_mov_b32 s101, 0')
    stamp(p)
    wait_flags(p, 2, m3)
    stamp(p)
    p(f's_cmp_eq_u32 s{sLAY8}, 0')
    p('s_cbranch_scc0 Lno4l')
    w4_load_block(p)
    p.flush()
    p.label('Lno4l')
    htok = p3_body(p, None)
    publish(p, 6)
    stamp(p)
    st4 = p4_body(p, kend)
    stamp(p)
    p4_run(p, st4, kend)
    publish(p, 7, halo=True)
    p.flush(mem=False)
    p.label('Lidle')
    p.vm = []
    stamp(p)
    p(f's_cmp_eq_u32 s{sLAY8}, 0')
    p(f's_cbranch_scc0 {kend}')

    def m1(p):
        p(f's_cmp_eq_u32 s{sHF}, 0')
        p('s_mov_b32 s100, 0x0fffff80')
        p('s_cselect_b32 s100, 0x3fff, s100')
        p(f's_or_b32 s101, s{sHF}, 0')
        p(f's_cmp_eq_u32 s{sU}, 0')
        p('s_cselect_b32 s101, 1, s101')
        p('s_cmp_eq_u32 s101, 0')
        p('s_cselect_b32 s101, 0x0fe00000, 0')
    wait_flags(p, 7, m1)
    stamp(p)
    set_layer(p, 1)
    p1_run(p, 1)
    p.flush()
    p('s_branch Ltail')
    p.label(kend)
    if TS:
        p.raw('    s_cmp_ge_u32 s2, 256')
        p.raw(f'    s_cbranch_scc1 {kend}2')
        stamp(p)
        p.label(kend + '2')
    p('s_endpgm')
    p.label('Lcode_end')
    txt = f'; @launch grid=(256,1,1) block=(256,1,1) lds={LDS_BYTES}\n'
    txt += '.amdgcn_target "amdgcn-amd-amdhsa--gfx950"\n.text\n' + p.text()
    txt += '.section .rodata,"a"\n.p2align 6\n' + kd(kn)
    print('instrs', p.ninstr, 'nop states', p.nops, file=sys.stderr)
    return txt


if __name__ == '__main__':
    out = sys.argv[1] if len(sys.argv) > 1 and not sys.argv[1].startswith('--') else f'cdna_kernels/{NAME}.s'
    open(out, 'w').write(build())
```

```python
import sys, struct
from asmgen import Prog, vr, ar, sr

NAME = 'interleave_layers__sliding_local_dilated__swiglu_ffn__prompt'


def ARG(name, default):
    return sys.argv[sys.argv.index(name) + 1] if name in sys.argv else default


TS = '--ts' in sys.argv
FORCE_SLOW = '--slow' in sys.argv

X_OFF, ST_OFF, ST2_OFF, H_OFF = 0, 0x1C0000, 0x1DC000, 2 << 20
SLOW0, RSTRIDE = 64 << 20, 16 << 20
FL_OFF = 40 << 20
G_OFF = 4096
TS_OFF = FL_OFF + 65536
HX_OFF = FL_OFF + (512 << 10)
HS_OFF = FL_OFF + (768 << 10)
WT3_OFF = 42 << 20
WT4_OFF = 46 << 20
WS_BYTES = 128 << 20
OOB = 0x7ff00000
LW = 0
L_CS = 86016
LS = L_CS + 1536
L_XCH = LS + 57344
L_SA = L_XCH
L_CON = L_XCH + 10240
L_PM = L_CON + 4096
L_RS = L_PM + 1024
LDS_BYTES = L_RS + 1024
L_HALO = LS
L_XR = LS
L_H0 = LS + 49152
L_PK = L_H0 + 14336
assert L_PK + 4096 == L_CON
assert LDS_BYTES <= 163840

sDBGP = 0
sLAY8, sMODE, sCNT, sTGT, sTS = 3, 4, 5, 6, 7
S_X0, S_WQKV, S_WO, S_WG, S_WU, S_WD, S_OUT, S_WS, S_IN, S_XO = 8, 12, 16, 20, 24, 28, 32, 36, 40, 44
sOB, sX2 = 20, 21
sPR = 22
sU, sQ, sW, sJ, sHF, sRHO, sGAM, sLB, sFLO, sMT0 = 48, 49, 50, 51, 52, 53, 54, 55, 56, 57
sRK, sOK, sKS_IN, sKS_OUT = 58, 59, 60, 61
sDG = 62
sDGA = 70
sT = 72
sPTR = 72
S_DBG = 96
sM2 = 100

vLANE, vL16, vG, vC, vLIN, vLOUT, vFL, vX = 0, 1, 2, 3, 4, 5, 6, 7
W3X = 172
LOG2E = 1.4426950408889634
ONES = '0x3f803f80'


def f32(x):
    return '0x%08x' % struct.unpack('<I', struct.pack('<f', x))[0]


_lab = [0]


def newlab(x):
    _lab[0] += 1
    return f'L{x}_{_lab[0]}'


def srd(p, s, lo, hi, nbytes):
    p(f's_mov_b32 s{s}, s{lo}')
    p(f's_and_b32 s{s + 1}, s{hi}, 0xffff')
    p(f's_mov_b32 s{s + 2}, {nbytes}')
    p(f's_mov_b32 s{s + 3}, 0x20000')


def barrier(p, lg=True):
    if lg:
        p.wait(lg=0)
    p('s_barrier')


def mstore(p, lines, mode=sMODE):
    ls, ld = newlab('slow'), newlab('sdone')
    p(f's_cmp_eq_u32 s{mode}, 0')
    p(f's_cbranch_scc0 {ls}')
    n0 = len(p.out)
    t = None
    for x in lines:
        t = p(x)
    body = p.out[n0:]
    p.raw(f'    s_branch {ld}')
    p.label(ls)
    for x in body:
        p.raw(x + (' sc1' if 'buffer_store' in x else ''))
    p.label(ld)
    return t


def cond_block(p, branch, body):
    lab = newlab('cb')
    p(f'{branch} {lab}')
    slot, hist, vm, lg = p.slot, list(p.hist), list(p.vm), list(p.lg)
    body(p)
    p.flush(mem=False)
    p.label(lab)
    p.slot, p.hist = slot, hist
    p.vm, p.lg = vm, lg


def stamp(p):
    if not TS:
        return
    p('s_memrealtime s[100:101]')
    p.wait(lg=0)
    p(f'v_mov_b32 v{vX}, s100')
    p(f'buffer_store_dword v{vX}, off, {sr(S_WS, 4)}, s{sTS}')
    p('s_memtime s[100:101]')
    p.wait(lg=0)
    p(f'v_mov_b32 v{vX}, s100')
    p(f'buffer_store_dword v{vX}, off, {sr(S_WS, 4)}, s{sTS} offset:256')
    p(f's_add_u32 s{sTS}, s{sTS}, 4')


def emit(p, x):
    if callable(x):
        return x(p)
    if isinstance(x, tuple):
        return mstore(p, x[1])
    return p(x)


def cost(x):
    if callable(x):
        return getattr(x, 'cost', 8)
    if isinstance(x, tuple):
        return 12 + 4 * len(x[1])
    m = x.split()[0]
    if m in ('v_exp_f32', 'v_rcp_f32', 'v_sqrt_f32', 'v_rsq_f32'):
        return 8
    if m.startswith('ds_write_b128'):
        return 24
    if x.endswith(' lds'):
        return 12
    return 4


def bf16r(dst, src):
    return [f'v_cvt_pk_bf16_f32 v{dst}, v{src}, v{src}', f'v_lshlrev_b32 v{dst}, 16, v{dst}']


def finalize(s1, s2, pm, rstd, tmp):
    o = [f'v_mul_f32 v{pm}, {f32(-1.0 / 448)}, v{s1}',
         f'v_mul_f32 v{tmp}, {f32(1.0 / 448)}, v{s2}',
         f'v_fma_f32 v{tmp}, -v{pm}, v{pm}, v{tmp}',
         f'v_max_f32 v{tmp}, 0, v{tmp}',
         f'v_cvt_pk_bf16_f32 v{pm}, v{pm}, v{pm}']
    o += bf16r(tmp, tmp)
    o += [f'v_add_f32 v{tmp}, {f32(1e-5)}, v{tmp}']
    o += bf16r(tmp, tmp)
    o += [f'v_sqrt_f32 v{tmp}, v{tmp}']
    o += bf16r(tmp, tmp)
    o += [f'v_rcp_f32 v{rstd}, v{tmp}']
    return o


def greduce(regs, tmps, op='v_add_f32'):
    o = []
    for sw in ('v_permlane32_swap_b32', 'v_permlane16_swap_b32'):
        for r, t in zip(regs, tmps):
            o.append(f'v_mov_b32 v{t}, v{r}')
        for r, t in zip(regs, tmps):
            o.append(f'{sw} v{r}, v{t}')
        for r, t in zip(regs, tmps):
            o.append(f'{op} v{r}, v{r}, v{t}')
    return o


def diag(dst, D):
    o = [f'v_cndmask_b32 v{dst}, 0, v{D}, {sr(sDG, 2)}']
    for r in range(1, 4):
        o.append(f'v_cndmask_b32 v{dst}, v{dst}, v{D + r}, {sr(sDG + 2 * r, 2)}')
    return o


def split3(A, B, cs, t0):
    return [f'v_and_b32 v{t0}, 0xffff0000, v{cs}',
            f'v_sub_f32 v{B}, v{cs}, v{t0}',
            f'v_and_b32 v{A}, 0xffff0000, v{B}',
            f'v_sub_f32 v{B}, v{B}, v{A}',
            f'v_lshrrev_b32 v{t0}, 16, v{t0}',
            f'v_or_b32 v{A}, v{A}, v{t0}',
            f'v_lshrrev_b32 v{B}, 16, v{B}']


class Stream:
    def __init__(self, p, budget, wb=2, minage=3, urgent=4):
        self.p, self.budget, self.wb, self.minage, self.urgent = p, budget, wb, minage, urgent
        self.tok, self.when = {}, {}
        self.fired = set()
        self.waited = set()

    def issue(self, r, gap):
        t = None
        for x in r['lines']:
            t = self.p(x)
        self.tok[r['id']] = t
        self.when[r['id']] = gap

    def ok(self, r, i):
        return r['after'] <= i and (r.get('gate') is None or r['gate'] in self.fired)

    def pre(self, rds):
        for q in rds:
            while q and self.ok(q[0], -1):
                self.issue(q.pop(0), -10)

    def drain(self, marker=None):
        if marker is not None and not any(x is marker for _, x in self.fill):
            return
        while self.fill:
            x = self.fill.pop(0)[1]
            emit(self.p, x)
            if x is marker:
                break

    def marker(self, name, fn=None):
        def m(p):
            if fn:
                fn(p)
            self.fired.add(name)
        m.cost = 0 if fn is None else 8
        return m

    def run(self, mf, rds, fill, events=None):
        p = self.p
        events = events or {}
        fill = self.fill = list(fill)
        need = {}
        for i, (_, deps) in enumerate(mf):
            for d in deps:
                need.setdefault(d, i)
        self.pre(rds)
        for i, (txt, deps) in enumerate(mf):
            bud = self.budget
            nd = [d for d in deps if d not in self.waited]
            for d in nd:
                assert d in self.tok, f'dep {d} of mfma {i} not issued'
            if nd:
                ext = list(nd)
                for j in range(i + 1, min(i + self.wb, len(mf))):
                    for d in mf[j][1]:
                        if d in self.tok and i - self.when[d] >= self.minage:
                            ext.append(d)
                n0 = p.ninstr
                for d in sorted(set(ext), key=lambda d: -self.tok[d]):
                    p.wait_tok(self.tok[d])
                    self.waited.add(d)
                bud -= 4 * (p.ninstr - n0)
            p(txt)
            if i in events:
                n0 = p.ninstr
                events[i](p, self)
                bud -= 4 * (p.ninstr - n0)
            for q in rds:
                while q and self.ok(q[0], i):
                    c = sum(cost(x) for x in q[0]['lines'])
                    if c > bud and need.get(q[0]['id'], 1 << 30) - i > self.urgent:
                        break
                    self.issue(q.pop(0), i)
                    bud -= c
            while fill and fill[0][0] <= i and cost(fill[0][1]) <= bud:
                bud -= cost(fill[0][1])
                emit(p, fill.pop(0)[1])
        for q in rds:
            assert not q, f'unissued reads {q[0]}'
        return [x for _, x in fill]


def kd(kname):
    return f""".amdhsa_kernel {kname}
  .amdhsa_next_free_vgpr 512
  .amdhsa_next_free_sgpr 102
  .amdhsa_accum_offset 256
  .amdhsa_group_segment_fixed_size 0
  .amdhsa_kernarg_size 80
  .amdhsa_user_sgpr_count 2
  .amdhsa_user_sgpr_kernarg_segment_ptr 1
  .amdhsa_system_sgpr_workgroup_id_x 1
  .amdhsa_float_denorm_mode_32 3
.end_amdhsa_kernel
"""


def flag_store(p, val):
    p(f's_add_u32 s{sTGT}, s{sLAY8}, {val}')
    p(f'v_mov_b32 v{vX}, s{sTGT}')
    mstore(p, [f'buffer_store_dword v{vX}, off, {sr(S_WS, 4)}, s{sFLO}'])


def poll_loop(p, tgt):
    lp, dn = newlab('wl'), newlab('wd')
    p(f's_mov_b32 s{sCNT}, {1 << 16}')
    p.flush(mem=False)
    p.label(lp)
    p.raw(f'    buffer_load_dword v{vX}, v{vFL}, {sr(S_WS, 4)}, 0 offen sc1')
    p.raw('    s_waitcnt vmcnt(0)')
    p.raw(f'    v_cmp_gt_u32 vcc, {tgt}, v{vX}')
    p.raw(f'    s_cbranch_vccz {dn}')
    p.raw(f'    s_sub_u32 s{sCNT}, s{sCNT}, 1')
    p.raw(f'    s_cbranch_scc0 {lp}')
    p.label(dn)
    p.raw('    s_mov_b64 exec, -1')


def wait_flags(p, val, maskcode):
    lab = newlab('wt')
    p.flush(mem=False)
    p(f's_cmp_eq_u32 s{sW}, 0')
    p(f's_cbranch_scc0 {lab}')
    p(f's_add_u32 s{sTGT}, s{sLAY8}, {val}')
    maskcode(p)
    p('s_mov_b64 exec, s[100:101]')
    poll_loop(p, f's{sTGT}')
    p.label(lab)
    barrier(p, lg=False)
    p.flush(mem=False)
```

```python
from g4a import *

M16 = 'v_mfma_f32_16x16x32_bf16'
M32 = 'v_mfma_f32_32x32x16_bf16'

ACC, HACC, WR, NWS, AF, NAS = 16, 64, 68, 8, 100, 12
PMT = 148
RK, MM, RQ, TA = 160, 164, 168, 170
SREG, PMK, KPV, VF = 116, 132, 136, 100
vT0L, vT1L, vT0H, vT1H, vHWL, vHWH, vHA, vTMP = 8, 9, 10, 11, 12, 13, 14, 15
XA, HA = 112, 56
NW3A = int(ARG('--nw3', 28))


def w3reg(f):
    return ('v', 176 + 4 * f) if f < 20 else ('a', 224 + 4 * (f - 20))


def w3op(f, lo=0, n=4):
    k, b = w3reg(f)
    return vr(b + lo, n) if k == 'v' else ar(b + lo, n)


SQ, SM, CQ, ONE0 = 176, 188, 196, 204
PKR = 208
vXA, vXB, vW1, vPAT, vZ = 232, 233, 234, 235, 236
vXR0, vXR1, vHR0, vHR1 = 238, 239, 240, 241
sW1O = 29
sXT = S_IN
sPKD = 41
NONCROSS = [0, 1, 3, 5, 7, 8, 10, 12, 14]
RANK = {j: i for i, j in enumerate(NONCROSS + [j for j in range(16) if j not in NONCROSS])}


def x_dma(i):
    o = [f's_lshl_b32 s{sCNT}, s{sPR + i}, 7', f's_add_u32 s{sCNT}, s{sCNT}, s{sXT}',
         f's_lshl_b32 s{sTGT}, s{sW}, 12', f's_add_u32 m0, s{sTGT}, {L_XR + 16384 * (i % 3)}']
    for X in range(2):
        for hh in range(2):
            if X or hh:
                o.append('s_add_u32 m0, m0, 1024')
            if X and not hh:
                o.append(f's_add_u32 s{sCNT}, s{sCNT}, 14336')
            o.append(f'buffer_load_dwordx4 v{(vXA, vXB)[hh]}, {sr(S_X0, 4)}, s{sCNT} offen lds')
    return o


def w_dma(i):
    o = [f's_mul_i32 s{sCNT}, s{sPR + i}, {64 * 2688}', f's_mul_i32 s{sTGT}, s{sW}, 3072',
         f's_add_u32 m0, s{sTGT}, {LW + 12288 * i}']
    for e in range(3):
        if e:
            o.append('s_add_u32 m0, m0, 1024')
        o.append(f's_add_u32 s{sTGT}, s{sCNT}, s{sW1O + e}')
        o.append(f'buffer_load_dwordx4 v{vW1}, {sr(S_WQKV, 4)}, s{sTGT} offen lds')
    return o


def prologue(p, kname):
    tok = {}
    p.raw(f'.globl {kname}\n.p2align 8\n.type {kname},@function\n{kname}:')
    p('s_cmp_ge_u32 s2, 256')
    p(f's_cbranch_scc1 {kname}_end')
    if TS:
        p('s_memrealtime s[92:93]')
        p('s_memtime s[94:95]')
    p(f's_load_dwordx16 {sr(sPTR, 16)}, s[0:1], 0')
    p(f's_load_dwordx4 {sr(sPTR + 16, 4)}, s[0:1], 64')
    p(f's_getpc_b64 {sr(S_XO, 2)}')
    p.label('Lpc')
    p(f's_lshr_b32 s{sQ}, s2, 3')
    p(f's_and_b32 s{S_XO + 1}, s{S_XO + 1}, 0xffff')
    p(f's_mov_b32 s{S_XO + 2}, Lcode_end-Lpc')
    p(f's_mov_b32 s{S_XO + 3}, 0x20000')
    p(f's_and_b32 s{sJ}, s{sQ}, 15')
    p(f's_lshl_b32 s{sU}, s{sJ}, 12')
    p('v_lshlrev_b32 v1, 4, v0')
    p(f'buffer_load_dwordx4 v[168:171], v1, {sr(S_XO, 4)}, s{sU} offen')
    p(f's_and_b32 s{sU}, s2, 7')
    p('v_lshrrev_b32 v7, 6, v0')
    p(f'v_readfirstlane_b32 s{sW}, v7')
    p(f'v_and_b32 v{vLANE}, 63, v0')
    p(f'v_lshlrev_b32 v{vL16}, 4, v{vLANE}')
    p(f'v_lshrrev_b32 v{vG}, 4, v{vLANE}')
    p(f'v_and_b32 v{vC}, 15, v{vLANE}')
    p(f's_lshr_b32 s{sHF}, s{sQ}, 4')
    p(f's_mul_i32 s{sRHO}, s{sQ}, 37')
    p(f's_lshr_b32 s{sRHO}, s{sRHO}, 8')
    p(f's_mul_i32 s{sGAM}, s{sRHO}, 7')
    p(f's_sub_u32 s{sGAM}, s{sQ}, s{sGAM}')
    p(f's_lshl_b32 s{sMT0}, s{sU}, 4')
    p(f's_lshl_b32 s{sCNT}, s{sHF}, 3')
    p(f's_add_u32 s{sMT0}, s{sMT0}, s{sCNT}')
    rk = sum(RANK[j] << (4 * j) for j in range(16))
    A, B, C, D = sRK, sOK, sKS_IN, sKS_OUT
    p(f's_mov_b32 s{sM2}, {hex(rk & 0xffffffff)}')
    p(f's_mov_b32 s{sM2 + 1}, {hex(rk >> 32)}')
    p(f's_lshl_b32 s{A}, s{sJ}, 2')
    p(f's_lshr_b64 {sr(sM2, 2)}, {sr(sM2, 2)}, s{A}')
    p(f's_and_b32 s{A}, s{sM2}, 15')
    p(f's_lshl_b32 s{A}, s{A}, 6')
    p(f's_add_u32 s{sCNT}, s{sCNT}, s{sU}')
    p(f's_lshl_b32 s{sCNT}, s{sCNT}, 2')
    p(f's_add_u32 s{A}, s{A}, s{sCNT}')
    p(f's_add_u32 s{A}, s{A}, s{sW}')
    p(f'v_lshrrev_b32 v8, 3, v{vLANE}')
    p(f'v_and_b32 v9, 7, v{vLANE}')
    p('v_mul_u32_u24 v10, 3584, v8')
    p('v_lshl_add_u32 v10, v9, 4, v10')
    p('v_mul_u32_u24 v12, 896, v8')
    p('v_lshl_add_u32 v11, v9, 4, v12')
    sSRC = sDG
    for i in range(2):
        if i:
            p(f's_add_u32 s{A}, s{A}, 1024')
        p(f's_mul_i32 s{B}, s{A}, 2341')
        p(f's_lshr_b32 s{B}, s{B}, 16')
        p(f's_mul_i32 s{C}, s{B}, 28')
        p(f's_sub_u32 s{C}, s{A}, s{C}')
        p(f's_mul_i32 s{sSRC + 2 * i}, s{B}, {8 * 3584}')
        p(f's_lshl_b32 s{D}, s{C}, 7')
        p(f's_add_u32 s{sSRC + 2 * i}, s{sSRC + 2 * i}, s{D}')
        p(f's_mul_i32 s{C}, s{C}, 114688')
        p(f's_lshl_b32 s{B}, s{B}, 9')
        p(f's_add_u32 s{C}, s{C}, s{B}')
        p(f's_add_u32 s{sPKD + 2 * i}, s{C}, {WT3_OFF}')
        p(f's_mul_i32 s{B}, s{A}, 9363')
        p(f's_lshr_b32 s{B}, s{B}, 16')
        p(f's_mul_i32 s{C}, s{B}, 7')
        p(f's_sub_u32 s{C}, s{A}, s{C}')
        p(f's_mul_i32 s{sSRC + 2 * i + 1}, s{B}, {8 * 896}')
        p(f's_lshl_b32 s{D}, s{C}, 7')
        p(f's_add_u32 s{sSRC + 2 * i + 1}, s{sSRC + 2 * i + 1}, s{D}')
        p(f's_mul_i32 s{C}, s{C}, 229376')
        p(f's_lshr_b32 s{D}, s{B}, 2')
        p(f's_lshl_b32 s{D}, s{D}, 12')
        p(f's_add_u32 s{C}, s{C}, s{D}')
        p(f's_and_b32 s{D}, s{B}, 3')
        p(f's_lshl_b32 s{D}, s{D}, 8')
        p(f's_add_u32 s{C}, s{C}, s{D}')
        p(f's_add_u32 s{sPKD + 2 * i + 1}, s{C}, {WT4_OFF}')
    p(f's_cmp_ge_u32 s{A}, 1568')
    p(f's_cselect_b32 s{sPKD + 2}, {OOB}, s{sPKD + 2}')
    p(f's_cselect_b32 s{sPKD + 3}, {OOB}, s{sPKD + 3}')
    p('v_lshrrev_b32 v13, 1, v8')
    p('v_xor_b32 v13, v13, v9')
    p(f'v_lshl_add_u32 v{vXA}, v13, 4, v12')
    p(f'v_xor_b32 v{vXB}, 64, v{vXA}')
    p(f'v_add_u32 v{vXB}, 7168, v{vXB}')
    p(f's_lshl_b32 s{sXT}, s{sW}, 1')
    p(f's_add_u32 s{sXT}, s{sXT}, s{sMT0}')
    p(f's_mul_i32 s{sXT}, s{sXT}, 14336')
    p(f'v_lshrrev_b32 v13, 2, v{vC}')
    p(f'v_lshl_add_u32 v13, v{vG}, 3, v13')
    p(f'v_and_b32 v14, 1, v{vG}')
    p('v_lshlrev_b32 v14, 1, v14')
    p(f'v_and_b32 v15, 3, v{vC}')
    p('v_xor_b32 v14, v14, v15')
    p(f'v_mul_u32_u24 v{vW1}, 2688, v13')
    p(f'v_lshl_add_u32 v{vW1}, v14, 4, v{vW1}')
    p(f's_mul_i32 s{sCNT}, s{sJ}, 56')
    p(f's_lshr_b32 s{sTGT}, s{sW}, 1')
    p(f's_mul_i32 s{sTGT}, s{sTGT}, {32 * 2688}')
    p(f's_add_u32 s{sCNT}, s{sCNT}, s{sTGT}')
    p(f'v_add_u32 v{vW1}, s{sCNT}, v{vW1}')
    p(f's_lshl_b32 s{sCNT}, s{sW}, 5')
    p(f'v_xor_b32 v15, s{sCNT}, v{vXA}')
    p(f's_sub_u32 s{sCNT}, s{sMT0}, 1')
    p(f's_max_i32 s{sCNT}, s{sCNT}, 0')
    p(f's_mul_i32 s{sCNT}, s{sCNT}, 14336')
    p(f's_mul_i32 s{sTGT}, s{sW}, 3584')
    p(f's_add_u32 s{sCNT}, s{sCNT}, s{sTGT}')
    p(f'v_add_u32 v15, s{sCNT}, v15')
    P = sPTR
    srd(p, S_WG, P + 8, P + 9, 448 * 3584)
    srd(p, S_WU, P + 10, P + 11, 448 * 3584)
    srd(p, S_WD, P + 12, P + 13, 1792 * 896)
    for i in range(2):
        p(f'buffer_load_dwordx4 {vr(PKR + 12 * i, 4)}, v10, {sr(S_WG, 4)}, s{sSRC + 2 * i} offen')
        p(f'buffer_load_dwordx4 {vr(PKR + 12 * i + 4, 4)}, v10, {sr(S_WU, 4)}, s{sSRC + 2 * i} offen')
        p(f'buffer_load_dwordx4 {vr(PKR + 12 * i + 8, 4)}, v11, {sr(S_WD, 4)}, s{sSRC + 2 * i + 1} offen')
    srd(p, S_X0, P + 0, P + 1, 2048 * 896)
    srd(p, S_WQKV, P + 2, P + 3, 448 * 2688)
    p(f's_mov_b32 s{sPR}, s{sGAM}')
    for i in range(1, 7):
        p(f's_add_u32 s{sPR + i}, s{sPR + i - 1}, 1')
        p(f's_cmp_eq_u32 s{sPR + i}, 7')
        p(f's_cselect_b32 s{sPR + i}, 0, s{sPR + i}')
    p(f's_bitcmp1_b32 s{sW}, 0')
    for e, (ev, od) in enumerate(((0, 11648), (10752, 1792), (896, 12544))):
        p(f's_mov_b32 s{sW1O + e}, {ev}')
        p(f's_cselect_b32 s{sW1O + e}, {od}, s{sW1O + e}')

    def em(l, key):
        for x in l:
            tok[key] = p(x)
    em(x_dma(0), ('x', 0))
    em(x_dma(1), ('x', 1))
    p(f's_cmp_eq_u32 s{sW}, 0')
    p('s_cselect_b32 exec_lo, 0xffffff00, -1')
    p('s_mov_b32 exec_hi, 0')
    p(f's_lshl_b32 s{sTGT}, s{sW}, 9')
    p(f's_add_u32 m0, s{sTGT}, {L_H0}')
    for i in range(7):
        if i:
            p('s_add_u32 m0, m0, 2048')
        p(f's_lshl_b32 s{sCNT}, s{sPR + i}, 7')
        p(f'buffer_load_dwordx4 v15, {sr(S_X0, 4)}, s{sCNT} offen lds')
    p('s_mov_b64 exec, -1')
    em(w_dma(0), ('w', 0))
    em(x_dma(2), ('x', 2))
    em(w_dma(1), ('w', 1))
    srd(p, S_WO, P + 4, P + 5, 448 * 896)
    srd(p, S_OUT, P + 14, P + 15, 2048 * 896)
    srd(p, S_WS, P + 18, P + 19, WS_BYTES)
    p(f's_mov_b32 s{sDBGP}, s{P + 16}')
    p(f's_mov_b32 s{sDBGP + 1}, s{P + 17}')
    p(f's_mov_b32 s{sLAY8}, 0')
    for r in range(4):
        p(f's_mov_b32 s{sDG + 2 * r}, {(1 | 1 << 20) << r}')
        p(f's_mov_b32 s{sDG + 2 * r + 1}, {hex((1 << 8 | 1 << 28) << r)}')
    p(f's_mov_b32 s{sDGA}, 0x00f0000f')
    p(f's_mov_b32 s{sDGA + 1}, 0xf0000f00')
    p(f's_lshl_b32 s{sCNT}, s{sU}, 7')
    p(f's_add_u32 s{sCNT}, s{sCNT}, {FL_OFF}')
    p(f'v_lshlrev_b32 v{vFL}, 2, v{vLANE}')
    p(f'v_add_u32 v{vFL}, s{sCNT}, v{vFL}')
    p(f'v_add_u32 v7, {G_OFF - 256}, v{vFL}')
    p(f'v_cmp_gt_u32 vcc, 32, v{vLANE}')
    p(f'v_cndmask_b32 v{vFL}, v7, v{vFL}, vcc')
    p(f's_lshl_b32 s{sFLO}, s{sQ}, 2')
    p(f's_add_u32 s{sFLO}, s{sFLO}, s{sCNT}')
    p(f's_cmp_eq_u32 s{sW}, 0')
    p(f's_cselect_b32 s{sFLO}, s{sFLO}, {OOB}')
    if TS:
        p(f's_lshl_b32 s{sTS}, s2, 2')
        p(f's_add_u32 s{sTS}, s{sTS}, s{sW}')
        p(f's_lshr_b32 s{sTS}, s{sTS}, 1')
        p(f's_lshl_b32 s{sTS}, s{sTS}, 9')
        p(f's_add_u32 s{sTS}, s{sTS}, {TS_OFF}')
        p(f'v_mov_b32 v{vX}, s92')
        p(f'buffer_store_dword v{vX}, off, {sr(S_WS, 4)}, s{sTS}')
        p(f'v_mov_b32 v{vX}, s94')
        p(f'buffer_store_dword v{vX}, off, {sr(S_WS, 4)}, s{sTS} offset:256')
        p(f's_add_u32 s{sTS}, s{sTS}, 4')
    p(f'v_mov_b32 v{vZ}, 0')
    p(f'v_mov_b32 v{vZ + 1}, 0')
    p(f'buffer_store_dword v{vZ}, off, {sr(S_WS, 4)}, s{sFLO} sc1')
    p(f's_add_u32 s{sCNT}, s{sFLO}, {G_OFF}')
    p(f'buffer_store_dword v{vZ}, off, {sr(S_WS, 4)}, s{sCNT} sc1')
    return tok


def p1_addr():
    o = [f'v_lshrrev_b32 v{vTMP}, 2, v{vC}',
         f'v_lshlrev_b32 v{vT0L}, 8, v{vG}',
         f'v_lshl_add_u32 v{vT0L}, v{vTMP}, 6, v{vT0L}',
         f'v_and_b32 v{vTMP}, 3, v{vC}',
         f'v_lshl_add_u32 v{vT0L}, v{vTMP}, 3, v{vT0L}',
         f'v_and_b32 v{vTMP}, 1, v{vG}',
         f'v_lshl_add_u32 v{vT0L}, v{vTMP}, 5, v{vT0L}',
         f'v_xor_b32 v{vT1L}, 32, v{vT0L}',
         f'v_add_u32 v{vT0H}, {7 * 6144}, v{vT0L}',
         f'v_add_u32 v{vT1H}, {7 * 6144}, v{vT1L}',
         f's_and_b32 s{sT}, s{sW}, 1',
         f's_lshl_b32 s{sT}, s{sT}, 5',
         f'v_xor_b32 v{vHWL}, s{sT}, v{vT0L}',
         f's_lshr_b32 s{sT}, s{sW}, 1',
         f's_lshl_b32 s{sT}, s{sT}, 11',
         f's_add_u32 s{sT}, s{sT}, 2048',
         f'v_add_u32 v{vHWL}, s{sT}, v{vHWL}',
         f'v_add_u32 v{vHWH}, {7 * 6144}, v{vHWL}',
         f'v_add_u32 v{vHA}, {L_HALO}, v{vL16}']
    return o


def w1read(dst, k, n):
    m, t = n >> 1, n & 1
    a = (vT0L, vT1L)[t] if k < 7 else (vT0H, vT1H)[t]
    off = (k % 7) * 6144 + m * 2048
    return [f'ds_read_b64_tr_b16 {vr(dst, 2)}, v{a} offset:{LW + off}',
            f'ds_read_b64_tr_b16 {vr(dst + 2, 2)}, v{a} offset:{LW + off + 1024}']


def prewarm(part):
    A, B, I = sT + 1, sT + 2, sT + 3
    o = [f'v_lshlrev_b32 v4, 7, v{vLANE}',
         f's_lshl_b32 s{I}, s{sU}, 7', f's_lshl_b32 s{B}, s{sQ}, 2',
         f's_add_u32 s{I}, s{I}, s{B}', f's_add_u32 s{I}, s{I}, s{sW}',
         f's_lshr_b32 s{A}, s{I}, 3', f's_mul_i32 s{A}, s{A}, 57344', f's_and_b32 s{B}, s{I}, 7']
    if part == 0:
        o += [f's_lshl_b32 s{B}, s{B}, 11', f's_add_u32 s{A}, s{A}, s{B}', f's_add_u32 s{A}, s{A}, {H_OFF}',
              's_mov_b64 exec, 0xffff',
              f'buffer_load_dword a0, v4, {sr(S_WS, 4)}, s{A} offen',
              f's_mul_i32 s{A}, s{I}, {14 * 128}', 's_mov_b64 exec, 0x3fff',
              f'buffer_load_dword a1, v4, {sr(S_WS, 4)}, s{A} offen',
              's_mov_b64 exec, 1',
              f'buffer_load_dword a2, v4, {sr(S_OUT, 4)}, s{A} offen',
              f's_lshl_b32 s{A}, s{sQ}, 14', f's_lshl_b32 s{B}, s{sU}, 11', f's_add_u32 s{A}, s{A}, s{B}',
              f's_lshl_b32 s{B}, s{sW}, 9', f's_add_u32 s{A}, s{A}, s{B}', f's_add_u32 s{A}, s{A}, {ST_OFF}',
              f's_cmp_lt_u32 s{sQ}, 14', f's_cselect_b32 s{A}, s{A}, {OOB}', 's_mov_b64 exec, 15',
              f'buffer_load_dword a3, v4, {sr(S_WS, 4)}, s{A} offen',
              f's_and_b32 s{A}, s{I}, 127', f's_mul_i32 s{A}, s{A}, {25 * 128}', 's_mov_b64 exec, 0x1ffffff',
              f'buffer_load_dword a4, v4, {sr(S_WO, 4)}, s{A} offen']
    else:
        o += [f's_mul_i32 s{B}, s{B}, 5120', f's_add_u32 s{A}, s{A}, s{B}', f's_add_u32 s{A}, s{A}, {H_OFF + 16384}',
              's_mov_b32 exec_hi, 0xff',
              f'buffer_load_dword a5, v4, {sr(S_WS, 4)}, s{A} offen']
    return o + ['s_mov_b64 exec, -1']


def w3_loads(f0, f1, sX):
    o = [f's_lshl_b32 s{sX}, s{sQ}, 2', f's_add_u32 s{sX}, s{sX}, s{sW}', f's_mul_i32 s{sX}, s{sX}, 28672',
         f's_add_u32 s{sX}, s{sX}, {WT3_OFF + 1024 * f0}', f's_cmp_lt_u32 s{sQ}, 28', f's_cselect_b32 s{sX}, s{sX}, {OOB}']
    for f in range(f0, f1):
        if f > f0 and (f - f0) % 4 == 0:
            o.append(f's_add_u32 s{sX}, s{sX}, 4096')
        o.append(f'buffer_load_dwordx4 {w3op(f)}, v{vL16}, {sr(S_WS, 4)}, s{sX} offen offset:{1024 * ((f - f0) % 4)} sc1')
    return o


def init0(p, tok):
    p.comment('---- init0')
    BP, BC, PK = 16, 20, 24
    p(f'v_lshlrev_b32 v28, 2, v{vG}')
    p(f'v_sub_u32 v28, v{vC}, v28')
    p(f'v_mov_b32 v29, {f32(-1e30)}')
    p('v_mov_b32 v32, 0xffff')
    p('v_mov_b32 v33, 0xffff0000')
    for r in range(4):
        for (B, add, pk) in ((BC, 0, PK + 2), (BP, 16, PK)):
            p(f'v_add_u32 v30, {add - r}, v28')
            p('v_and_b32 v30, 0xfffffff1, v30')
            p('v_cmp_eq_u32 vcc, 0, v30')
            p(f'v_cndmask_b32 v{B + r}, v29, 0, vcc')
            if r & 1:
                p(f'v_cndmask_b32 v{pk + (r >> 1)}, v{pk + (r >> 1)}, v33, vcc')
            else:
                p(f'v_cndmask_b32 v{pk + (r >> 1)}, 0, v32, vcc')
    p(f'v_add_u32 v31, {L_CON}, v{vL16}')
    p(f'ds_write_b128 v31, {vr(BP, 4)}')
    p(f'ds_write_b128 v31, {vr(BC, 4)} offset:1024')
    p(f'ds_write_b128 v31, {vr(PK, 4)} offset:3072')
    for r in range(4):
        p(f'v_mov_b32 v{36 + r}, v29')
    p(f'ds_write_b128 v31, {vr(36, 4)} offset:2048')
    for r in range(4):
        p(f'v_mov_b32 v{40 + r}, 0')
    p(f'v_add_u32 v31, {L_CS}, v{vL16}')
    p(f'ds_write_b128 v31, {vr(40, 4)}')
    p(f'ds_write_b128 v31, {vr(40, 4)} offset:512')
    for r in range(4):
        p(f'v_mov_b32 v{ONE0 + r}, {ONES}')
    p('v_min_u32 v31, 6, v8')
    p('v_lshlrev_b32 v31, 11, v31')
    p('v_lshl_add_u32 v31, v9, 4, v31')
    p(f'v_add_u32 v31, {L_H0}, v31')
    p(f'ds_write_b128 v31, {vr(ONE0, 4)}')
    p(f'v_min_u32 v34, 2, v{vG}')
    p('v_lshlrev_b32 v34, 10, v34')
    p(f'v_lshl_add_u32 v34, v{vC}, 6, v34')
    p(f'v_lshrrev_b32 v35, 2, v{vC}')
    p('v_and_b32 v35, 1, v35')
    p('v_xor_b32 v35, 1, v35')
    p('v_lshl_add_u32 v34, v35, 5, v34')
    p(f's_mul_i32 s{sT}, s{sW}, 3072')
    p(f's_add_u32 s{sT}, s{sT}, {LW + 24}')
    p(f'v_add_u32 v{vPAT}, s{sT}, v34')
    p(f'v_lshrrev_b32 v34, 1, v{vC}')
    p(f'v_xor_b32 v34, v34, v{vG}')
    p('v_lshlrev_b32 v34, 4, v34')
    p(f'v_lshl_add_u32 v34, v{vC}, 7, v34')
    p(f'v_add_u32 v{vHR0}, {L_H0}, v34')
    p(f'v_xor_b32 v{vHR1}, 64, v{vHR0}')
    p(f's_lshl_b32 s{sT}, s{sW}, 12')
    p(f's_add_u32 s{sT}, s{sT}, {L_XR}')
    p(f'v_add_u32 v{vXR0}, s{sT}, v34')
    p(f'v_xor_b32 v{vXR1}, 64, v{vXR0}')
    assert L_XR % 128 == 0 and L_H0 % 128 == 0
    p(f's_lshl_b32 s{sT}, s{sW}, 10')
    p(f's_add_u32 s{sT}, s{sT}, {L_PK}')
    p(f'v_add_u32 v16, s{sT}, v{vL16}')
    p(f'v_lshrrev_b32 v21, 2, v{vC}')
    p('v_lshlrev_b32 v21, 7, v21')
    p(f'v_lshl_add_u32 v21, v{vG}, 5, v21')
    p(f'v_add_u32 v21, s{sT}, v21')
    p(f'v_and_b32 v22, 3, v{vC}')
    p('v_lshl_add_u32 v18, v22, 3, v21')
    p(f'v_and_b32 v22, 1, v{vC}')
    p('v_lshl_add_u32 v17, v22, 4, v21')
    p(f'v_bfe_u32 v22, v{vC}, 1, 1')
    p('v_lshl_add_u32 v17, v22, 3, v17')
    p(f'v_lshlrev_b32 v22, 4, v{vC}')
    p(f'v_mul_u32_u24 v19, 28672, v{vG}')
    p('v_add_u32 v19, v19, v22')
    p(f'v_lshl_add_u32 v20, v{vG}, 10, v22')
    for x in p1_addr():
        p(x)
    srd(p, S_DBG, sDBGP, sDBGP + 1, 256)
    stamp(p)
    for un in range(6):
        R = PKR + 4 * un
        p(f'ds_write_b128 v16, {vr(R, 4)}')
        a = 18 if un % 3 == 2 else 17
        p(f'ds_read_b64_tr_b16 {vr(R, 2)}, v{a}')
        p(f'ds_read_b64_tr_b16 {vr(R + 2, 2)}, v{a} offset:512')
    for un in range(6):
        R = PKR + 4 * un
        i, m = un // 3, un % 3
        if m == 2:
            p(f'buffer_store_dwordx4 {vr(R, 4)}, v20, {sr(S_WS, 4)}, s{sPKD + 2 * i + 1} offen sc1')
        else:
            p(f'buffer_store_dwordx4 {vr(R, 4)}, v19, {sr(S_WS, 4)}, s{sPKD + 2 * i} offen offset:{256 * m} sc1')


def announce():
    return [f's_getreg_b32 s{sCNT}, hwreg(HW_REG_XCC_ID, 0, 4)',
            f's_or_b32 s{sCNT}, s{sCNT}, 0x80',
            f'v_mov_b32 v{vX}, s{sCNT}',
            f's_lshl_b32 s{sCNT}, s{sU}, 5',
            f's_add_u32 s{sCNT}, s{sCNT}, s{sQ}',
            f's_cmp_eq_u32 s{sW}, 0',
            f's_cselect_b32 s{sCNT}, s{sCNT}, 0x1000',
            f'buffer_store_byte v{vX}, off, {sr(S_DBG, 4)}, s{sCNT} sc1']


def cf_zero_keys(tb):
    f = [f'v_mov_b32 v{PMT + 4 * X + d}, 0' for X in range(3) for d in range(1, 4)]
    f += [f's_lshl_b32 s{sT}, s{sW}, 7',
          f's_add_u32 s{sT}, s{sT}, {L_PM + 64}',
          f'v_lshl_add_u32 v{tb}, v{vC}, 2, s{sT}',
          f'v_and_b32 v{RK}, 1, v{vC}',
          f'v_lshl_add_u32 v{RK}, v{vG}, 2, v{RK}',
          f'v_add_u32 v{RK + 1}, 2, v{RK}',
          f'v_cmp_gt_u32 vcc, v{RK}, v{vC}',
          f'v_lshl_add_u32 v{MM}, v{RK}, 2, s{sT}',
          f'v_subrev_u32 v{MM + 2}, 64, v{MM}',
          f'v_cndmask_b32 v{MM}, v{MM}, v{MM + 2}, vcc',
          f'v_cmp_gt_u32 vcc, v{RK + 1}, v{vC}',
          f'v_lshl_add_u32 v{MM + 1}, v{RK + 1}, 2, s{sT}',
          f'v_subrev_u32 v{MM + 2}, 64, v{MM + 1}',
          f'v_cndmask_b32 v{MM + 1}, v{MM + 1}, v{MM + 2}, vcc',
          f'v_lshlrev_b32 v{tb + 1}, 2, v{vC}',
          f'v_add_u32 v{tb + 1}, {L_PM}, v{tb + 1}']
    return f


def cf_rk():
    return [f'ds_read_b32 v{RK}, v{MM} offset:1024', f'ds_read_b32 v{RK + 1}, v{MM + 1} offset:1024',
            f'ds_read_b32 v{RK + 2}, v{MM} offset:1088', f'ds_read_b32 v{RK + 3}, v{MM + 1} offset:1088']


def cf_bias_addr():
    return [f's_lshl_b32 s{sT}, s{sW}, 1', f's_add_u32 s{sT}, s{sT}, s{sMT0}', f's_cmp_eq_u32 s{sT}, 0',
            f's_cselect_b32 s{sT + 1}, 2048, 0', f'v_add_u32 v{TA}, {L_CON}, v{vL16}',
            f'v_add_u32 v{TA + 1}, s{sT + 1}, v{TA}']


def cf_bias():
    return [f'ds_read_b128 {vr(SREG, 4)}, v{TA + 1}', f'ds_read_b128 {vr(SREG + 4, 4)}, v{TA} offset:1024',
            f'ds_read_b128 {vr(SREG + 8, 4)}, v{TA}', f'ds_read_b128 {vr(SREG + 12, 4)}, v{TA} offset:1024',
            f'ds_read_b128 {vr(PMK, 4)}, v{TA} offset:3072']


QS = (28 ** -0.5) * LOG2E


def cf_rq():
    return [f'v_mul_f32 v{RQ}, {f32(QS)}, v{RQ}', f'v_mul_f32 v{RQ + 1}, {f32(QS)}, v{RQ + 1}']


def cf_mm():
    return [f'v_mul_f32 v{MM}, v{RK}, v{RQ}', f'v_mul_f32 v{MM + 1}, v{RK + 1}, v{RQ}',
            f'v_mul_f32 v{MM + 2}, v{RK + 2}, v{RQ + 1}', f'v_mul_f32 v{MM + 3}, v{RK + 3}, v{RQ + 1}']


def cf_csaddr():
    return [f'v_lshlrev_b32 v{TA}, 2, v{vLANE}', f'v_add_u32 v{TA}, {L_CS}, v{TA}',
            f's_lshl_b32 s{sT}, s{sW}, 8', f'v_add_u32 v{TA + 1}, s{sT}, v{TA}']


class Ring:
    def __init__(self, mf):
        self.q, self.last, self.n, self.mf = [], {}, 0, mf

    def slot(self, idn, fn, gate=None):
        s = self.n % NWS
        self.n += 1
        self.q.append(dict(id=idn, lines=fn(WR + 4 * s), after=self.last.get(s, -1), gate=gate))
        return s

    def done(self, *slots):
        for s in slots:
            self.last[s] = len(self.mf) - 1


def hwread(d, hk):
    a = vHWL if hk < 7 else vHWH
    off = LW + (hk % 7) * 6144
    return [f'ds_read_b64_tr_b16 {vr(d, 2)}, v{a} offset:{off}',
            f'ds_read_b64_tr_b16 {vr(d + 2, 2)}, v{a} offset:{off + 1024}']


def corr_step(mf, R):
    for n in [2, 3, 4, 5, 'h', 0, 1]:
        if n == 'h':
            s = R.slot(('c', n), lambda d: [f'ds_read_b32 v{d}, v{TA + 1} offset:512'], gate='cs')
            mf.append((f'{M16} {vr(HACC, 4)}, {vr(WR + 4 * s, 4)}, {vr(PMT + 8, 4)}, {vr(HACC, 4)}', [('c', n)]))
        else:
            s = R.slot(('c', n), lambda d, n=n: [f'ds_read_b32 v{d}, v{TA} offset:{256 * n}'], gate='cs')
            W = vr(WR + 4 * s, 4)
            for X in (1, 0):
                A = vr(PMT + 4 * X, 4)
                acc = vr(ACC + 24 * X + 4 * n, 4)
                ops = f'{W}, {A}' if n < 4 else f'{A}, {W}'
                mf.append((f'{M16} {acc}, {ops}, {acc}', [('c', n)]))
        R.done(s)


def xreg(k, X):
    return ar(XA + 8 * k + 4 * X, 4) if X < 2 else ar(HA + 4 * k, 4)


def xread(k, X):
    i, kp = k >> 1, k & 1
    if X < 2:
        return f'ds_read_b128 {xreg(k, X)}, v{(vXR0, vXR1)[kp]} offset:{16384 * (i % 3) + 2048 * X}'
    return f'ds_read_b128 {xreg(k, X)}, v{(vHR0, vHR1)[kp]} offset:{2048 * i}'


vW2 = 245


def w2_addr(v, t):
    return [f'v_lshrrev_b32 v{v}, 3, v{vLANE}', f'v_and_b32 v{t}, 6, v{v}', f'v_and_b32 v{vX}, 7, v{vLANE}',
            f'v_xor_b32 v{t}, v{t}, v{vX}', f'v_mul_u32_u24 v{v}, 896, v{v}', f'v_lshl_add_u32 v{v}, v{t}, 4, v{v}',
            f's_lshl_b32 s{sCNT}, s{sGAM}, 7', f'v_add_u32 v{v}, s{sCNT}, v{v}']


def w2_dma_part(s, first, v=vW2, t=5):
    o = w2_addr(v, t) if first else []
    n = 4 if s < 3 else 2
    o += [f's_mul_i32 s{sCNT}, s{sW}, {n * 7168}', f's_add_u32 s{sCNT}, s{sCNT}, {16 * s * 7168}',
          f's_mul_i32 s{sTGT}, s{sW}, {n * 1024}', f's_add_u32 m0, s{sTGT}, {LS + 16384 * s}']
    for e in range(n):
        if e:
            o += ['s_add_u32 m0, m0, 1024', f's_add_u32 s{sCNT}, s{sCNT}, 7168']
        o.append(f'buffer_load_dwordx4 v{v}, {sr(S_WO, 4)}, s{sCNT} offen lds')
    return o


def p1_l0(p, tok, vload):
    p.comment('---- P1 main layer 0')
    mf, xq = [], []
    R = Ring(mf)
    gstart, pos = {}, {}

    def xo(i):
        for k in (2 * i, 2 * i + 1):
            for X in range(3):
                F = xreg(k, X)
                a = vr(SQ + 4 * X, 4)
                mf.append((f'{M16} {a}, {F}, {F}, {"0" if k == 0 else a}', [('x', k, X)]))
                if X < 2:
                    a = vr(SM + 4 * X, 4)
                    mf.append((f'{M16} {a}, {vr(ONE0, 4)}, {F}, {"0" if k == 0 else a}', [('x', k, X)]))

    def wd(k, n):
        g = ('g', k >> 1)
        if n == 'h':
            s = R.slot(('hw', k), lambda d: hwread(d, k), gate=g)
            mf.append((f'{M16} {vr(HACC, 4)}, {vr(WR + 4 * s, 4)}, {xreg(k, 2)}, {"0" if k == 0 else vr(HACC, 4)}',
                       [('hw', k), ('x', k, 2)]))
        else:
            s = R.slot(('w', k, n), lambda d: w1read(d, k, n), gate=g)
            W = vr(WR + 4 * s, 4)
            for X in range(2):
                acc = vr(ACC + 24 * X + 4 * n, 4)
                A = xreg(k, X)
                ops = f'{W}, {A}' if n < 4 else f'{A}, {W}'
                mf.append((f'{M16} {acc}, {ops}, {"0" if k == 0 else acc}', [('w', k, n), ('x', k, X)]))
            if n < 2:
                a = vr(CQ + 4 * n, 4)
                mf.append((f'{M16} {a}, {vr(ONE0, 4)}, {W}, {"0" if k == 0 else a}', [('w', k, n)]))
        R.done(s)
    for i in range(7):
        gstart[i] = len(mf)
        if i < 6:
            xo(i)
        if i < 6:
            for k in (2 * i, 2 * i + 1):
                for n in ['h', 0, 1, 2, 3, 4, 5]:
                    wd(k, n)
                if i == 5 and k == 10:
                    xo(6)
                    pos['st'] = len(mf) + 1
        else:
            for k in (12, 13):
                for n in ['h', 0, 1]:
                    wd(k, n)
            pos['cs'] = len(mf) + 1
            for k in (12, 13):
                for n in [2, 3, 4, 5]:
                    wd(k, n)
    pos['end'] = len(mf)
    corr_step(mf, R)
    for i in range(7):
        for k in (2 * i, 2 * i + 1):
            for X in range(3):
                if i == 0 and X < 2:
                    continue
                xq.append(dict(id=('x', k, X), after=-1, gate=('g', max(i - 1, 0)), lines=[xread(k, X)]))
    st = Stream(p, 8, wb=4, minage=4, urgent=8)
    p.wait_tok(tok[('x', 0)])
    for k in range(2):
        for X in range(2):
            st.issue(dict(id=('x', k, X), lines=[xread(k, X)]), -10)
    TB, CW = 242, 244
    M0_, M1_ = sT + 4, sT + 6
    early = cf_zero_keys(TB) + cf_bias_addr() + cf_bias() + cf_csaddr()
    early += [f's_mov_b32 s{M0_}, 0xffff', f's_mov_b32 s{M0_ + 1}, 0', f's_mov_b32 s{M1_}, 0xffff0000', f's_mov_b32 s{M1_ + 1}, 0',
              f's_lshl_b32 s{sT}, s{sW}, 8', f's_add_u32 s{sT}, s{sT}, {L_CS + 512}',
              f'v_lshl_add_u32 v{CW}, v{vG}, 4, s{sT}', f'v_add_u32 v{CW + 1}, {L_PK}, v{vL16}',
              f'v_cmp_eq_u32 vcc, 0, v{vC}', f'v_cndmask_b32 v{CW}, v{CW + 1}, v{CW}, vcc']
    for x in early[:12]:
        p(x)
    p.wait_tok(st.tok[('x', 1, 1)])

    def em(l, key):
        for x in l:
            tok[key] = p(x)
    em(x_dma(3), ('x', 3))
    em(w_dma(2), ('w', 2))
    for x in early[12:]:
        p(x)

    def gbar(i):
        def ev(p, st):
            if i == 6:
                st.drain(mk6)
            p.wait_tok(tok[('w', i)])
            off = 12288 * i
            if off > 65535:
                p(f'v_add_u32 v{vPAT}, {off}, v{vPAT}')
                off = 0
            t = p(f'ds_write_b64 v{vPAT}, {vr(vZ, 2)} offset:{off}')
            p.wait_tok(t)
            p('s_barrier')
            if '--p1ts' in sys.argv:
                stamp(p)
            st.fired.add(('g', i))
            ins = []
            if i == 2:
                ins += announce()

            def refill(p):
                p.wait_tok(st.tok[('x', 2 * i + 3, 1)])
                if i + 4 <= 6:
                    em(x_dma(i + 4), ('x', i + 4))
                em(w_dma(i + 3), ('w', i + 3))
                if i == PWA:
                    for x in prewarm(0):
                        p(x)
                if i == 3:
                    for x in prewarm(1):
                        p(x)
            refill.cost = 0

            def w2part(p):
                if i < 6:
                    p.wait_tok(st.tok[('x', 2 * i + 3, 1)])
                for x in w2_dma_part((i + 1) % 3 if i < 6 else 3, i == 3):
                    p(x)
            w2part.cost = 0
            ins = [(0, x) for x in ins]
            if i + 3 <= 6:
                ins.append((gstart[i] + 8, refill))
            if i >= 3:
                ins.append((gstart[i] + (8 if i < 6 else 0), w2part))
            st.fill[0:0] = ins
        return ev
    PWA = int(ARG('--pwa', 1))
    D = AF
    h = []
    for X in range(3):
        h += diag(D + X, SQ + 4 * X)
    h += [f'v_cndmask_b32 v{D + 3}, 0, v{SQ + 8}, {sr(M0_, 2)}']
    h += greduce([D, D + 1, D + 2, D + 3], [D + 4, D + 5, D + 6, D + 7])
    fa = finalize(SM, D, PMT, RQ, D + 4)
    fb = finalize(SM + 4, D + 1, PMT + 4, RQ + 1, D + 5)
    fh = finalize(D + 3, D + 2, PMT + 8, D + 2, D + 6)
    for x in zip(fa, fb, fh):
        h += list(x)
    h += [f'ds_write_b32 v{TB}, v{RQ} offset:1024', f'ds_write_b32 v{TB}, v{RQ + 1} offset:1088',
          f'ds_write_b32 v{TB + 1}, v{D + 2} offset:1024'] + cf_rq()
    fill = [(pos['st'], x) for x in h[:len(h) - 32]]
    mk6 = st.marker('mk6')
    fill.append((0, mk6))
    fill += [(0, x) for x in h[len(h) - 32:]]
    mk6b = st.marker('mk6b')
    fill.append((0, mk6b))
    fill += [(0, x) for x in vload]
    c = []
    sp = [split3(D + r, D + 4 + r, HACC + r, D + 8 + r) for r in range(4)]
    sp += [split3(CQ + 4 * n + 1, CQ + 4 * n + 2, CQ + 4 * n, CQ + 4 * n + 3) for n in range(2)]
    for x in zip(*sp):
        c += list(x)
    c += [f'ds_write_b128 v{CW}, {vr(D, 4)}', f'ds_write_b128 v{CW}, {vr(D + 4, 4)} offset:64']
    for n in range(2):
        b = CQ + 4 * n
        c += [f'v_cndmask_b32 v{b}, 0, v{b + 1}, {sr(M0_, 2)}', f'v_cndmask_b32 v{b}, v{b}, v{b + 2}, {sr(M1_, 2)}',
              f'ds_write_b32 v{TA}, v{b} offset:{256 * n}']
    fill += [(pos['cs'], x) for x in c]

    def csbar(p):
        barrier(p)
    mc = st.marker('cs', csbar)
    fill.append((0, mc))
    fill += [(0, x) for x in cf_rk() + cf_mm()]
    events = {}
    for i in range(1, 7):
        events[gstart[i] - 1] = gbar(i)
    g6 = events[gstart[6] - 1]

    def ev6(p, st):
        g6(p, st)
        for q in (R.q,):
            while q and st.ok(q[0], gstart[6] - 1):
                st.issue(q.pop(0), gstart[6] - 1)
        st.drain(mk6b)
    events[gstart[6] - 1] = ev6
    events[pos['end'] - 5] = lambda p, st: st.drain(mc)
    st.fill = []
    gbar(0)(p, st)
    fill = st.fill + fill
    left = st.run(mf, [xq, R.q], fill, events)
    for x in left:
        emit(p, x)


def p1_l1(p):
    p.comment('---- P1 main layer 1')
    mf, aq = [], []
    R = Ring(mf)
    kgap = {}
    for k in range(14):
        kgap[k] = len(mf)
        for n in range(6):
            s = R.slot(('w', k, n), lambda d, k=k, n=n: w1read(d, k, n))
            W = vr(WR + 4 * s, 4)
            for X in range(2):
                idx = 2 * k + X
                A = vr(AF + 4 * (idx % NAS), 4)
                acc = vr(ACC + 24 * X + 4 * n, 4)
                ops = f'{W}, {A}' if n < 4 else f'{A}, {W}'
                mf.append((f'{M16} {acc}, {ops}, {"0" if k == 0 else acc}', [('w', k, n), ('a', idx)]))
            R.done(s)
        for hk in ([2 * (k - 7), 2 * (k - 7) + 1] if k >= 7 else []):
            s1 = R.slot(('hw', hk), lambda d, hk=hk: hwread(d, hk))
            s2 = R.slot(('ha', hk), lambda d, hk=hk: [f'ds_read_b128 {vr(d, 4)}, v{vHA} offset:{hk * 1024}'], gate='bar')
            mf.append((f'{M16} {vr(HACC, 4)}, {vr(WR + 4 * s1, 4)}, {vr(WR + 4 * s2, 4)}, {"0" if hk == 0 else vr(HACC, 4)}',
                       [('hw', hk), ('ha', hk)]))
            R.done(s1, s2)
    kgap[14] = len(mf)
    corr_step(mf, R)
    st = Stream(p, 8, wb=4, minage=4, urgent=8)
    events, fill = {}, []
    return st, mf, R, aq, kgap


def p1_l1_pre(p):
    st, mf, R, aq, kgap = S = p1_l1(p)
    sA = sT + 4
    sHs, sSt = sT + 11, sT + 12
    vB = vTMP
    for x in p1_addr():
        p(x)
    p(f's_lshl_b32 s{sT}, s{sW}, 1')
    p(f's_add_u32 s{sT}, s{sT}, s{sMT0}')
    p(f's_mul_i32 s{sT}, s{sT}, 14336')
    p(f's_add_u32 s{sT}, s{sT}, s{sX2}')
    for i in range(7):
        p(f's_lshl_b32 s{sA + i}, s{sPR + i}, 11')
        p(f's_add_u32 s{sA + i}, s{sA + i}, s{sT}')
    p(f'v_add_u32 v{vB}, 14336, v{vL16}')
    for idx in range(28):
        k, X = idx >> 1, idx & 1
        after = -1 if idx < NAS else kgap[(idx - NAS) // 2] + 11
        aq.append(dict(id=('a', idx), after=after, lines=[
            f'buffer_load_dwordx4 {vr(AF + 4 * (idx % NAS), 4)}, v{(vL16, vB)[X]}, {sr(S_WS, 4)}, s{sA + (k >> 1)} offen offset:{(k & 1) * 1024} sc1']))
    p(f's_sub_u32 s{sT}, s{sMT0}, 1')
    p(f's_max_i32 s{sT}, s{sT}, 0')
    p(f's_mul_i32 s{sT}, s{sT}, 14336')
    p(f's_add_u32 s{sT}, s{sT}, s{sX2}')
    p(f's_mul_i32 s{sHs}, s{sU}, 14336')
    p(f's_add_u32 s{sHs}, s{sHs}, {HX_OFF - 14336}')
    p(f's_cmp_eq_u32 s{sU}, 0')
    p(f's_cselect_b32 s{sT + 1}, 1, s{sHF}')
    p(f's_cmp_eq_u32 s{sT + 1}, 0')
    p(f's_cselect_b32 s{sHs}, s{sHs}, s{sT}')
    p(f's_lshl_b32 s{sT}, s{sMT0}, 7')
    p(f's_add_u32 s{sT}, s{sT}, s{sX2}')
    p(f's_add_u32 s{sT}, s{sT}, {ST2_OFF - 128}')
    p(f's_lshl_b32 s{sSt}, s{sU}, 7')
    p(f's_add_u32 s{sSt}, s{sSt}, {HS_OFF - 128}')
    p(f's_cmp_eq_u32 s{sT + 1}, 0')
    p(f's_cselect_b32 s{sSt}, s{sSt}, s{sT}')
    p(f's_add_u32 s{sT + 1}, s{sT}, 128')
    p(f's_cmp_eq_u32 s{sMT0}, 0')
    p(f's_cselect_b32 s{sSt}, s{sT + 1}, s{sSt}')
    p(f's_lshl_b32 s{sT + 1}, s{sW}, 9')
    p(f's_add_u32 s{sT}, s{sT}, s{sT + 1}')
    p(f's_cmp_eq_u32 s{sW}, 0')
    p(f's_cselect_b32 s{sSt}, s{sSt}, s{sT}')
    p(f'v_lshlrev_b32 v{TA}, 3, v{vLANE}')
    p(f'v_add_u32 v{TA + 1}, s{sSt}, v{TA}')
    p(f'v_add_u32 v{TA}, s{sT}, v{TA}')
    p(f'v_cmp_gt_u32 vcc, 16, v{vLANE}')
    p(f'v_cndmask_b32 v{TA}, v{TA}, v{TA + 1}, vcc')
    p(f's_lshl_b32 s{sT}, s{sW}, 6')
    p(f'v_add_u32 v{TA + 1}, s{sT}, v{vLANE}')
    p(f'v_cmp_gt_u32 vcc, 144, v{TA + 1}')
    p(f'v_mov_b32 v{TA + 1}, {OOB}')
    p(f'v_cndmask_b32 v{TA}, v{TA + 1}, v{TA}, vcc')
    st.pre([R.q])
    return S


def p1_l1_run(p, S):
    st, mf, R, aq, kgap = S
    sHs = sT + 11
    events, fill = {}, []
    first = aq[:4]
    del aq[:4]
    st.pre([first])
    for i in range(4):
        a, b = sPR + 2 * i, sPR + min(2 * i + 1, 6)
        p(f's_cmp_lt_u32 s{sW}, 2')
        p(f's_cselect_b32 s{sT}, s{a}, s{b}')
        p(f's_lshl_b32 s{sT}, s{sT}, 11')
        p(f's_and_b32 s{sT + 1}, s{sW}, 1')
        p(f's_lshl_b32 s{sT + 1}, s{sT + 1}, 10')
        p(f's_add_u32 s{sT}, s{sT}, s{sT + 1}')
        p(f's_add_u32 s{sT}, s{sT}, s{sHs}')
        if i == 3:
            p(f's_add_u32 m0, s{sT + 1}, {L_HALO + 12288}')
        else:
            p(f's_lshl_b32 s{sT + 1}, s{sW}, 10')
            p(f's_add_u32 m0, s{sT + 1}, {L_HALO + 4096 * i}')
        p(f'buffer_load_dwordx4 v{vL16}, {sr(S_WS, 4)}, s{sT} offen sc1 lds')
    SL = PMT
    p(f's_mov_b32 s{sT}, 0')
    for gm in range(7):
        if gm:
            p(f's_add_u32 s{sT}, s{sT}, 16384')
        p(f'buffer_load_dwordx2 {vr(SL + 2 * gm, 2)}, v{TA}, {sr(S_WS, 4)}, s{sT} offen sc1')
    h = []
    for gm in range(1, 7):
        h += [f'v_add_f32 v{SL}, v{SL}, v{SL + 2 * gm}', f'v_add_f32 v{SL + 1}, v{SL + 1}, v{SL + 2 * gm + 1}']
    h += finalize(SL, SL + 1, SL, SL + 1, SL + 2)
    h += [f's_lshl_b32 s{sT}, s{sW}, 8', f's_add_u32 s{sT}, s{sT}, {L_PM}',
          f'v_lshl_add_u32 v{TA}, v{vLANE}, 2, s{sT}',
          f'ds_write_b32 v{TA}, v{SL}']
    fill += [(kgap[2], x) for x in h]
    wtok = {}

    def lastw(p):
        wtok['t'] = p(f'ds_write_b32 v{TA}, v{SL + 1} offset:1024')
    lastw.cost = 4
    fill.append((0, lastw))
    fill += [(0, x) for x in cf_zero_keys(TA)]

    def bar(p):
        p.wait_tok(wtok['t'])
        p('s_barrier')
    mb = st.marker('bar', bar)
    fill.append((0, mb))
    fill += [(0, x) for x in [
        f'ds_read_b32 v{PMT}, v{TA}', f'ds_read_b32 v{PMT + 4}, v{TA} offset:64', f'ds_read_b32 v{PMT + 8}, v{TA + 1}',
        f'ds_read_b32 v{RQ}, v{TA} offset:1024', f'ds_read_b32 v{RQ + 1}, v{TA} offset:1088'] + cf_rk() + cf_bias_addr()]
    fill += [(kgap[g], x) for g, x in zip((9, 9, 10, 10, 11), cf_bias())]
    fill += [(0, x) for x in cf_rq() + cf_mm() + cf_csaddr()]
    events[kgap[6]] = lambda p, st: st.drain(mb)
    mc = st.marker('cs')
    fill.append((0, mc))
    events[kgap[13]] = lambda p, st: st.drain(mc)
    left = st.run(mf, [R.q, aq], fill, events)
    assert not left


def p1_tail(p, mid=None):
    p.comment('---- P1 tail')
    A, B = ACC, ACC + 24
    vE, vO = 8, 9

    def cvt(d, s):
        return f'v_cvt_pk_bf16_f32 v{d}, v{s}, v{s + 1}'
    p(f's_lshl_b32 s{sT}, s{sW}, 11')
    p(f's_add_u32 s{sT}, s{sT}, {L_XCH}')
    p(f'v_add_u32 v{vE}, s{sT}, v{vL16}')
    p(f'v_lshrrev_b32 v10, 2, v{vC}')
    p('v_lshlrev_b32 v10, 8, v10')
    p(f'v_lshl_add_u32 v10, v{vG}, 6, v10')
    p(f'v_and_b32 v11, 3, v{vC}')
    p('v_lshl_add_u32 v10, v11, 1, v10')
    p('v_add_u32 v10, 1024, v10')
    p(f's_cmp_lt_u32 s{sW}, 2')
    p(f's_cselect_b64 {sr(sM2, 2)}, -1, 0')
    p(f's_cselect_b32 s{sT}, 2, 16')
    p(f'v_cndmask_b32 v10, v10, v{vL16}, {sr(sM2, 2)}')
    p(f's_and_b32 s{sT + 1}, s{sW}, 1')
    p(f's_lshl_b32 s{sT + 1}, s{sT + 1}, 3')
    p(f's_add_u32 s{sT + 1}, s{sT + 1}, {L_XCH}')
    p(f'v_add_u32 v10, s{sT + 1}, v10')
    p(f'v_add_u32 v11, s{sT}, v10')
    p(f'v_add_u32 v12, s{sT}, v11')
    p(f'v_add_u32 v13, s{sT}, v12')
    for d in range(4):
        p(cvt(B + 8 + d, B + 8 + 2 * d))
    for t in range(2):
        for h in range(2):
            p(cvt(VF + 6 * t + 4 + h, B + 16 + 4 * t + 2 * h))
    p(f'ds_write_b128 v{vE}, {vr(B + 8, 4)} offset:2048')
    p(f'ds_write_b64 v{vE}, {vr(VF + 4, 2)} offset:{2048 + 1024}')
    p(f'ds_write_b64 v{vE}, {vr(VF + 10, 2)} offset:{2048 + 1024 + 8}')
    p(cvt(HACC, HACC))
    p(cvt(HACC + 1, HACC + 2))
    p(f'ds_write_b16 v10, v{HACC}')
    p(f'ds_write_b16_d16_hi v11, v{HACC}')
    p(f'ds_write_b16 v12, v{HACC + 1}')
    p(f'ds_write_b16_d16_hi v13, v{HACC + 1}')
    for d in range(4):
        p(cvt(B + d, B + 2 * d))
    for d in range(4):
        p(cvt(A + 8 + d, A + 8 + 2 * d))
    SA_, SB_ = SREG, SREG + 8
    p(f'{M16} {vr(SB_ + 4, 4)}, {vr(B + 8, 4)}, {vr(B, 4)}, {vr(SB_ + 4, 4)}')
    p(f'{M16} {vr(SB_, 4)}, {vr(A + 8, 4)}, {vr(B, 4)}, {vr(SB_, 4)}')
    for d in range(4):
        p(cvt(A + d, A + 2 * d))
    barrier(p)
    p(f'ds_read_b128 {vr(KPV, 4)}, v{vE}')
    p(f'ds_read_b64 {vr(VF, 2)}, v{vE} offset:1024')
    p(f'ds_read_b64 {vr(VF + 6, 2)}, v{vE} offset:{1024 + 8}')
    p(f'{M16} {vr(SA_ + 4, 4)}, {vr(A + 8, 4)}, {vr(A, 4)}, {vr(SA_ + 4, 4)}')
    for t in range(2):
        for h in range(2):
            p(cvt(VF + 6 * t + 2 + h, A + 16 + 4 * t + 2 * h))
    p(f'{M16} {vr(SA_, 4)}, {vr(KPV, 4)}, {vr(A, 4)}, {vr(SA_, 4)}')
    if mid:
        mid(p)
    seqs = []
    for X, S in ((1, SB_), (0, SA_)):
        T = (B if X else A) + 16
        x0, x1, mx, t0 = T, T + 1, T + 2, T + 3
        PF = T + 4
        O = (B if X else A)
        o = [f'v_max3_f32 v{x0}, v{S}, v{S + 1}, v{S + 4}', f'v_max3_f32 v{x1}, v{S + 2}, v{S + 3}, v{S + 6}',
             f'v_max_f32 v{x0}, v{x0}, v{S + 5}', f'v_max_f32 v{x1}, v{x1}, v{S + 7}',
             f'v_mul_f32 v{x0}, v{x0}, v{MM + 2 * X}', f'v_mul_f32 v{x1}, v{x1}, v{MM + 2 * X + 1}',
             f'v_max_f32 v{mx}, v{x0}, v{x1}']
        o += greduce([mx], [t0], 'v_max_f32')
        o += [f'v_sub_f32 v{x0}, v{x0}, v{mx}', f'v_sub_f32 v{x1}, v{x1}, v{mx}',
              f'v_exp_f32 v{x0}, v{x0}', f'v_exp_f32 v{x1}, v{x1}',
              f'v_add_f32 v{mx}, v{x0}, v{x1}']
        gr = greduce([mx], [t0])
        o += gr[:1] + [f'v_mul_f32 v{x0}, v{x0}, v{RK + 2 * X}'] + gr[1:4] + [f'v_mul_f32 v{x1}, v{x1}, v{RK + 2 * X + 1}'] + gr[4:]
        o += [f'v_rcp_f32 v{mx}, v{mx}',
              f'v_mul_f32 v{x0}, v{x0}, v{mx}', f'v_mul_f32 v{x1}, v{x1}, v{mx}',
              f'v_cvt_pk_bf16_f32 v{x0}, v{x0}, v{x0}', f'v_cvt_pk_bf16_f32 v{x1}, v{x1}, v{x1}',
              f'v_and_b32 v{PF}, v{x0}, v{PMK}', f'v_and_b32 v{PF + 1}, v{x1}, v{PMK + 1}',
              f'v_and_b32 v{PF + 2}, v{x0}, v{PMK + 2}', f'v_and_b32 v{PF + 3}, v{x1}, v{PMK + 3}']
        for t in range(2):
            o.append(f'{M16} {vr(O + 4 * t, 4)}, {vr(VF + 6 * t + 2 * X, 4)}, {vr(PF, 4)}, 0')
        seqs.append(o)
    for x, y in zip(*seqs):
        p(x)
        p(y)
    p(f's_lshl_b32 s{sT}, s{sW}, 1')
    p(f's_add_u32 s{sT}, s{sT}, s{sMT0}')
    p(f's_mul_i32 s{sT}, s{sT}, 57344')
    p(f's_lshl_b32 s{sT + 1}, s{sJ}, 10')
    p(f's_add_u32 s{sT}, s{sT}, s{sT + 1}')
    p(f's_add_u32 s{sT}, s{sT}, s{sOB}')
    p(f's_add_u32 s{sT + 1}, s{sT}, 57344')
    for O in (B, A):
        for d in range(4):
            p(cvt(O + d, O + 2 * d))
    return mstore(p, [f'buffer_store_dwordx4 {vr(B, 4)}, v{vL16}, {sr(S_WS, 4)}, s{sT + 1} offen',
                      f'buffer_store_dwordx4 {vr(A, 4)}, v{vL16}, {sr(S_WS, 4)}, s{sT} offen'])


vVA, vVD = 246, 247


def verify_load():
    return [f'v_lshlrev_b32 v{vVA}, 2, v{vLANE}',
            f'buffer_load_dword v{vVD}, v{vVA}, {sr(S_DBG, 4)}, 0 offen sc1']


def verify(p):
    lp, dn = newlab('vf'), newlab('vfd')
    p(f's_mov_b32 s{sCNT}, {1 << 16}')
    p(f'v_and_b32 v{vX}, 0x80808080, v{vVD}')
    p(f'v_cmp_ne_u32 vcc, 0x80808080, v{vX}')
    p.nop(1)
    p.raw(f'    s_cbranch_vccz {dn}')
    p.label(lp)
    p.raw(f'    buffer_load_dword v{vVD}, v{vVA}, {sr(S_DBG, 4)}, 0 offen sc1')
    p.raw('    s_waitcnt vmcnt(0)')
    p.raw(f'    v_and_b32 v{vX}, 0x80808080, v{vVD}')
    p.raw(f'    v_cmp_ne_u32 vcc, 0x80808080, v{vX}')
    p.raw(f'    s_cbranch_vccz {dn}')
    p.raw(f'    s_sub_u32 s{sCNT}, s{sCNT}, 1')
    p.raw(f'    s_cbranch_scc0 {lp}')
    p.label(dn)
    p(f's_getreg_b32 s{sCNT}, hwreg(HW_REG_XCC_ID, 0, 4)')
    p(f's_or_b32 s{sCNT}, s{sCNT}, 0x80')
    p(f's_mul_i32 s{sCNT}, s{sCNT}, 0x01010101')
    p(f'v_cmp_ne_u32 vcc, s{sCNT}, v{vVD}')
    p(f's_lshl_b32 s{sCNT}, s{sU}, 3')
    p(f's_lshr_b64 {sr(sM2, 2)}, vcc, s{sCNT}')
    p(f's_and_b32 s{sMODE}, s{sM2}, 0xff')
    if FORCE_SLOW:
        p(f's_mov_b32 s{sMODE}, 1')
```

```python
from g4a import *
from g4b import *


def xperm(dst, tmp, rowmajor):
    o = [f'v_and_b32 v{dst}, 1, v{vG}', f'v_lshrrev_b32 v{tmp}, 1, v{vG}', f'v_lshl_add_u32 v{dst}, v{dst}, 1, v{tmp}']
    if rowmajor:
        o += [f'v_mul_u32_u24 v{tmp}, 896, v{vC}', f'v_lshl_add_u32 v{dst}, v{dst}, 4, v{tmp}']
    else:
        o += [f'v_lshlrev_b32 v{tmp}, 4, v{vC}', f'v_lshl_add_u32 v{dst}, v{dst}, 8, v{tmp}']
    return o


def set_layer(p, layer):
    a, b = (vLIN, vLOUT) if layer == 0 else (vLOUT, vLIN)
    for x in xperm(a, vX, True) + xperm(b, vX, False):
        p(x)
    rm, xf = (S_IN, S_XO) if layer == 0 else (S_XO, S_IN)
    src = S_X0 if layer == 0 else S_OUT
    for i in range(4):
        p(f's_mov_b32 s{rm + i}, s{src + i}')
        p(f's_mov_b32 s{xf + i}, s{S_WS + i}')
    k_rm, k_xf = (sRK, sOK) if layer == 0 else (sOK, sRK)
    s_rm, s_xf = (sKS_IN, sKS_OUT) if layer == 0 else (sKS_OUT, sKS_IN)
    p(f's_lshl_b32 s{k_rm}, s{sGAM}, 7')
    p(f's_mov_b32 s{s_rm}, 64')
    p(f's_lshl_b32 s{k_xf}, s{sGAM}, 11')
    p(f's_cmp_eq_u32 s{sMODE}, 0')
    p(f's_cselect_b32 s{sLB}, 0, {SLOW0 + 2 * layer * RSTRIDE}')
    p(f's_cselect_b32 s{sOB}, 0, {SLOW0 + (2 * layer + 1) * RSTRIDE}')
    p(f's_cselect_b32 s{sX2}, 0, {SLOW0 + RSTRIDE}')
    p(f's_add_u32 s{sOB}, s{sOB}, {H_OFF}')
    p(f's_add_u32 s{k_xf}, s{k_xf}, s{sX2}')
    p(f's_mov_b32 s{s_xf}, 1024')
    p(f's_mov_b32 s{sLAY8}, {8 * layer}')


def w2_dma(p):
    for s in range(4):
        for x in w2_dma_part(s, s == 0, 14, 15):
            p(x)


def w3_colsum(p):
    p.comment('---- W3 colsum')
    SEL, CA = 8, 12
    p(f'v_lshrrev_b32 v{SEL}, 2, v{vC}')
    p(f'v_xor_b32 v{SEL}, v{SEL}, v{vG}')
    p(f'v_and_b32 v{SEL}, 1, v{SEL}')
    p(f'v_cmp_eq_u32 vcc, 0, v{SEL}')
    p(f'v_mov_b32 v{SEL + 1}, {ONES}')
    p(f'v_cndmask_b32 v{SEL}, 0, v{SEL + 1}, vcc')
    for r in range(1, 4):
        p(f'v_mov_b32 v{SEL + r}, v{SEL}')
    for f in range(28):
        p(f'{M16} {vr(CA, 4)}, {vr(SEL, 4)}, {w3op(f)}, {"0" if f == 0 else vr(CA, 4)}')
    for x in split3(W3X, W3X + 1, CA, W3X + 2):
        p(x)
    p(f's_mov_b32 s{sM2}, 0')
    p(f's_mov_b32 s{sM2 + 1}, -1')
    p(f'v_cndmask_b32 v{W3X}, v{W3X}, v{W3X + 1}, {sr(sM2, 2)}')
    for r in range(1, 4):
        p(f'v_mov_b32 v{W3X + r}, 0')


def out_pack(p, R, OUT):
    for s in range(2):
        for tt in range(2):
            for h in range(2):
                p(f'v_cvt_pk_bf16_f32 v{OUT + 4 * s + 2 * tt + h}, v{R + 8 * s + 4 * tt + 2 * h}, v{R + 8 * s + 4 * tt + 2 * h + 1}')
    for s in range(2):
        for h in range(2):
            p(f'v_permlane16_swap_b32 v{OUT + 4 * s + h}, v{OUT + 4 * s + 2 + h}')


def res_unpack(RES, R):
    o = []
    for s in range(2):
        for h in range(2):
            o.append(f'v_permlane16_swap_b32 v{RES + 4 * s + h}, v{RES + 4 * s + 2 + h}')
    for d in range(8):
        o += [f'v_lshlrev_b32 v{R + 2 * d}, 16, v{RES + d}', f'v_and_b32 v{R + 2 * d + 1}, 0xffff0000, v{RES + d}']
    return o


def stats_out(p, OUT, ONE, D, sOff, vA, extra=None):
    for s in range(2):
        F = vr(OUT + 4 * s, 4)
        p(f'{M16} {vr(D + 4, 4)}, {F}, {F}, {"0" if s == 0 else vr(D + 4, 4)}')
        p(f'{M16} {vr(D, 4)}, {vr(ONE, 4)}, {F}, {"0" if s == 0 else vr(D, 4)}')
    for x in diag(D + 1, D + 4):
        p(x)
    p(f's_mov_b64 exec, {sr(sDGA, 2)}')
    t = mstore(p, [f'buffer_store_dwordx2 {vr(D, 2)}, v{vA}, {sr(S_WS, 4)}, s{sOff} offen'])
    if extra is not None:
        p(f'buffer_store_dwordx2 {vr(D, 2)}, v{vA}, {sr(S_WS, 4)}, s{extra} offen sc1')
    p('s_mov_b64 exec, -1')
    return t


P2_OF, P2_ACC, P2_WR, P2_NW, P2_RES = 16, 80, 96, 17, 164


def p2_pre(p):
    p.comment('---- P2 pre')
    sMTW = sT + 4
    p(f's_lshl_b32 s{sMTW}, s{sU}, 4')
    p(f's_lshl_b32 s{sT}, s{sRHO}, 2')
    p(f's_add_u32 s{sMTW}, s{sMTW}, s{sT}')
    p(f's_add_u32 s{sMTW}, s{sMTW}, s{sW}')
    p(f's_mul_i32 s{sT}, s{sMTW}, 14336')
    p(f's_add_u32 s{sT}, s{sT}, s{sRK}')
    p(f's_add_u32 s{sT + 1}, s{sT}, s{sKS_IN}')
    p(f'buffer_load_dwordx4 {vr(P2_RES, 4)}, v{vLIN}, {sr(S_IN, 4)}, s{sT} offen sc1')
    p(f'buffer_load_dwordx4 {vr(P2_RES + 4, 4)}, v{vLIN}, {sr(S_IN, 4)}, s{sT + 1} offen sc1')
    T = P2_ACC
    for hh in range(2):
        if hh == 0:
            p(f'v_mov_b32 v{T}, v{vG}')
        else:
            p(f'v_cmp_eq_u32 vcc, 3, v{vG}')
            p(f'v_cndmask_b32 v{T}, v{vG}, 1, vcc')
        p(f'v_lshrrev_b32 v{T + 1}, 2, v{vC}')
        p(f'v_lshl_add_u32 v{T + 2}, v{T}, 2, v{T + 1}')
        p(f'v_lshlrev_b32 v{T + 3}, 7, v{T + 2}')
        p(f'v_bfe_u32 v{T + 2}, v{T + 2}, 1, 2')
        p(f'v_lshl_add_u32 v{T + 3}, v{T + 2}, 5, v{T + 3}')
        p(f'v_and_b32 v{T + 1}, 3, v{vC}')
        p(f'v_lshl_add_u32 v{T + 3}, v{T + 1}, 3, v{T + 3}')
        p(f'v_add_u32 v{8 + 4 * hh}, {LS}, v{T + 3}')
        for t in range(1, 4):
            p(f'v_xor_b32 v{8 + 4 * hh + t}, {32 * t}, v{8 + 4 * hh}')
    assert LS % 128 == 0
    mf, wq, oq = [], [], []
    for hd in range(16):
        for t in range(4):
            f = 4 * hd + t
            d = P2_WR + 4 * (f % P2_NW)
            tp = t ^ (2 * (hd & 1))
            wq.append(dict(id=('w', f), after=f - P2_NW, lines=[
                f'ds_read_b64_tr_b16 {vr(d, 2)}, v{8 + tp} offset:{28 * hd * 128}',
                f'ds_read_b64_tr_b16 {vr(d + 2, 2)}, v{12 + tp} offset:{(28 * hd + 16) * 128}']))
            a = vr(P2_ACC + 4 * t, 4)
            mf.append((f'{M16} {a}, {vr(d, 4)}, {vr(P2_OF + 4 * hd, 4)}, {a}', [('w', f), ('o', hd)]))
    sO = sT + 5
    p(f's_mul_i32 s{sO}, s{sMTW}, 57344')
    p(f's_add_u32 s{sO}, s{sO}, s{sOB}')
    for i in range(1, 4):
        p(f's_add_u32 s{sO + i}, s{sO}, {4096 * i}')
    for hd in range(16):
        oq.append(dict(id=('o', hd), after=-1, lines=[
            f'buffer_load_dwordx4 {vr(P2_OF + 4 * hd, 4)}, v{vL16}, {sr(S_WS, 4)}, s{sO + (hd >> 2)} offen offset:{(hd & 3) * 1024} sc1']))
    st = Stream(p, 8, wb=4, minage=4, urgent=8)
    st.pre([wq])
    for x in res_unpack(P2_RES, P2_ACC):
        p(x)
    return st, mf, wq, oq


def p2_body(p, state):
    p.comment('---- P2 body')
    st, mf, wq, oq = state
    sMTW = sT + 4
    ONE, vA, vB = P2_RES, P2_RES + 4, P2_RES + 5
    st.pre([oq])
    pre = [f'v_mov_b32 v{ONE + r}, {ONES}' for r in range(4)]
    pre += xperm(vA, vX, False)
    pre += [f'v_lshlrev_b32 v{vB}, 3, v{vC}',
            f's_mul_i32 s{sT}, s{sMTW}, 14336', f's_lshl_b32 s{sT + 1}, s{sGAM}, 11', f's_add_u32 s{sT}, s{sT}, s{sT + 1}',
            f's_add_u32 s{sT}, s{sT}, s{sLB}',
            f's_lshl_b32 s{sT + 1}, s{sMTW}, 7', f's_lshl_b32 s{sT + 2}, s{sGAM}, 14', f's_add_u32 s{sT + 1}, s{sT + 1}, s{sT + 2}',
            f's_add_u32 s{sT + 1}, s{sT + 1}, s{sLB}', f's_add_u32 s{sT + 1}, s{sT + 1}, {ST_OFF}']
    for x in pre:
        p(x)
    st.run(mf, [wq], [])
    OUT, D = P2_OF, P2_OF + 8
    out_pack(p, P2_ACC, OUT)
    mstore(p, [f'buffer_store_dwordx4 {vr(OUT, 4)}, v{vA}, {sr(S_WS, 4)}, s{sT} offen',
               f'buffer_store_dwordx4 {vr(OUT + 4, 4)}, v{vA}, {sr(S_WS, 4)}, s{sT} offen offset:1024'])
    return stats_out(p, OUT, ONE, D, sT + 1, vB)


def p3_body(p, w4load):
    p.comment('---- P3 body')
    A3, BF, NBS, ST3, TP, SL = 16, 48, 12, 96, 104, 116
    vRd, vSt, vOut, vT = 8, 9, 10, 11
    sX = sT
    sH = sT + 4
    sQn = sT + 8
    sWA, sWB, sS, sO = sT + 12, sT + 13, sT + 14, sT + 15
    sW4 = sT + 16
    p(f's_lshr_b32 s{sS}, s{sW}, 1')
    p(f's_mul_i32 s{sS}, s{sS}, 14336')
    p(f's_and_b32 s{sO}, s{sW}, 1')
    p(f's_lshl_b32 s{sWA}, s{sO}, 12')
    p(f's_add_u32 s{sWA}, s{sWA}, s{sS}')
    p(f's_mul_i32 s{sWB}, s{sO}, 3072')
    p(f's_add_u32 s{sWB}, s{sWB}, s{sS}')
    p(f's_add_u32 s{sWB}, s{sWB}, 8192')
    p(f's_mul_i32 s{sS}, s{sU}, {16 * 14336}')
    p(f's_add_u32 s{sS}, s{sS}, s{sLB}')
    p(f's_lshr_b32 s{sO}, s{sGAM}, 1')
    for i in range(4):
        p(f's_sub_u32 s{sQn + i}, s{sO}, {i}')
        p(f's_and_b32 s{sQn + i}, s{sQn + i}, 3')
        p(f's_mul_i32 s{sX + i}, s{sQn + i}, 57344')
        p(f's_add_u32 s{sX + i}, s{sX + i}, s{sS}')

    def dma(s, part):
        sw, n = (sWA, 4) if part == 0 else (sWB, 3)
        o = [f's_add_u32 s{sS}, s{sX + (s >> 1)}, s{sw}']
        if s & 1:
            o.append(f's_add_u32 s{sS}, s{sS}, 28672')
        o.append(f's_add_u32 m0, s{sw}, {LS + 28672 * (s & 1)}')
        for i in range(n):
            o.append(f'buffer_load_dwordx4 v{vL16}, {sr(S_WS, 4)}, s{sS} offen offset:{1024 * i} sc1 lds')
        return o
    dtok = {}

    def dma_now(s, part):
        for x in dma(s, part):
            dtok[(s, part)] = p(x)
    dma_now(0, 0)
    dma_now(0, 1)
    p(f's_lshl_b32 s{sS}, s{sU}, 11')
    p(f's_lshl_b32 s{sO}, s{sW}, 9')
    p(f's_add_u32 s{sS}, s{sS}, s{sO}')
    p(f's_add_u32 s{sS}, s{sS}, s{sLB}')
    p(f's_add_u32 s{sS}, s{sS}, {ST_OFF}')
    p(f'v_lshlrev_b32 v{vT}, 3, v{vLANE}')
    for gm in range(7):
        if gm:
            p(f's_add_u32 s{sS}, s{sS}, 16384')
        p(f'buffer_load_dwordx2 {vr(SL + 2 * gm, 2)}, v{vT}, {sr(S_WS, 4)}, s{sS} offen sc1')
    dma_now(1, 0)
    dma_now(1, 1)
    p(f'v_and_b32 v{vT}, 1, v{vG}')
    p(f'v_lshrrev_b32 v{vSt}, 1, v{vG}')
    p(f'v_lshlrev_b32 v{vRd}, 4, v{vC}')
    p(f'v_lshl_add_u32 v{vRd}, v{vSt}, 8, v{vRd}')
    p(f'v_mul_u32_u24 v{vOut}, 57344, v{vT}')
    p(f'v_add_u32 v{vOut}, v{vOut}, v{vRd}')
    p(f'v_mul_u32_u24 v{vT}, 14336, v{vT}')
    p(f'v_add_u32 v{vRd}, v{vRd}, v{vT}')
    p(f'v_add_u32 v{vRd}, {LS}, v{vRd}')
    p(f's_lshl_b32 s{sS}, s{sQ}, 11')
    p(f's_lshl_b32 s{sO}, s{sW}, 9')
    p(f's_add_u32 s{sS}, s{sS}, s{sO}')
    p(f'v_add_u32 v{vOut}, s{sS}, v{vOut}')
    p(f's_mul_i32 s{sS}, s{sU}, {16 * 57344}')
    p(f's_add_u32 s{sS}, s{sS}, s{sLB}')
    p(f's_add_u32 s{sS}, s{sS}, {H_OFF}')
    for i in range(4):
        p(f's_mul_i32 s{sH + i}, s{sQn + i}, {4 * 57344}')
        p(f's_add_u32 s{sH + i}, s{sH + i}, s{sS}')
        p(f's_lshl_b32 s{sQn + i}, s{sQn + i}, 10')
        p(f's_add_u32 s{sQn + i}, s{sQn + i}, {L_SA}')
    for i in range(2):
        p(f'v_mov_b32 v{ST3 + 4 * i + 2}, 0')
        p(f'v_mov_b32 v{ST3 + 4 * i + 3}, 0')
    p(f'v_and_b32 v12, 0x1f0, v{vL16}')

    def epi(s):
        A = A3 + 16 * (s & 1)
        c1 = ST3 + 4 * (s & 1) + 1
        o = []
        for i in range(8):
            o += [f'v_mul_f32 v{TP + i}, v{A + i}, v{c1}']
        for i in range(8):
            o += [f'v_exp_f32 v{TP + i}, v{TP + i}', f'v_mul_f32 v{A + i}, v{A + i}, v{A + 8 + i}']
        for i in range(8):
            o += [f'v_add_f32 v{TP + i}, 1.0, v{TP + i}']
            if i:
                o += [f'v_rcp_f32 v{TP + i - 1}, v{TP + i - 1}']
        o += [f'v_rcp_f32 v{TP + 7}, v{TP + 7}']
        for i in range(8):
            o += [f'v_mul_f32 v{A + i}, v{A + i}, v{TP + i}']
        for d in range(4):
            o += [f'v_cvt_pk_bf16_f32 v{TP + 8 + d}, v{A + 2 * d}, v{A + 2 * d + 1}']
        o += [f's_add_u32 s{sO}, s{sH + (s >> 1)}, {(s & 1) * 2 * 57344}']

        def st_(p, s=s):
            htok[s] = mstore(p, [f'buffer_store_dwordx4 {vr(TP + 8, 4)}, v{vOut}, {sr(S_WS, 4)}, s{sO} offen'])
        st_.cost = 16
        o.append(st_)
        return o
    htok = {}
    mf, rq = [], []
    for s in range(8):
        A = vr(A3 + 16 * (s & 1), 16)
        for f in range(28):
            gi = 28 * s + f
            prev = gi - NBS
            after = -1 if prev < 0 else 29 * (prev // 28) + prev % 28
            d = BF + 4 * (gi % NBS)
            rq.append(dict(id=gi, after=after, gate=(s, 0 if f < 16 else 1), lines=[
                f'ds_read_b128 {vr(d, 4)}, v{vRd} offset:{28672 * (s & 1) + 512 * f}']))
            mf.append((f'{M32} {A}, {w3op(f)}, {vr(d, 4)}, {"0" if f == 0 else A}', [gi]))
        mf.append((f'{M32} {A}, {vr(W3X, 4)}, {vr(ST3 + 4 * (s & 1), 4)}, {A}', []))
    st = Stream(p, 24, wb=3, minage=3, urgent=5)
    events = {}
    fill = []
    h = []
    for gm in range(1, 7):
        h += [f'v_add_f32 v{SL}, v{SL}, v{SL + 2 * gm}', f'v_add_f32 v{SL + 1}, v{SL + 1}, v{SL + 2 * gm + 1}']
    h += finalize(SL, SL + 1, SL, SL + 2, SL + 3)
    h += [f'v_mul_f32 v{SL + 1}, {f32(-LOG2E)}, v{SL + 2}', f'v_and_b32 v{SL + 1}, 0xffffff7f, v{SL + 1}',
          f'v_mul_f32 v{SL + 2}, v{SL + 2}, v{SL + 2}',
          f's_lshl_b32 s{sO}, s{sW}, 10', f's_add_u32 s{sO}, s{sO}, {L_SA}', f'v_add_u32 v{vT}, s{sO}, v{vL16}',
          f'ds_write_b128 v{vT}, {vr(SL, 4)}']
    fill += [(1, x) for x in h]
    mstat = st.marker('stat')
    fill.append((0, mstat))
    GB1, GB2 = int(ARG('--gb1', 8)), int(ARG('--gb2', 21))

    def mkbar(s, part):
        def ev(p, st):
            if (s, part) == (1, 0):
                st.drain(mstat)
            if s < 8:
                assert (s, part) in dtok, (s, part)
                p.wait_tok(dtok[(s, part)])
                assert rq[0]['gate'] == (s, part), (rq[0]['gate'], s, part)
            fl = None
            if part == 0 and s in (4, 6, 8):
                p.wait_tok(htok[s - 3])
                fl = 3 + (s - 4) // 2
            ps, pp = (s, 0) if part == 1 else (s - 1, 1)
            barrier(p, lg=s < 8)
            st.fired.add((s, part))
            if part == 0:
                p(f'v_add_u32 v{vSt}, s{sQn + ((s - 1) >> 1)}, v12')
                p(f'ds_read_b64 {vr(ST3 + 4 * ((s - 1) & 1), 2)}, v{vSt} offset:{512 * ((s - 1) & 1)}')
            ins = []
            if fl is not None:
                def fs(p, fl=fl):
                    flag_store(p, fl)
                fs.cost = 20
                ins.append((0, fs))
            if ps + 2 < 8:
                dl = dma(ps + 2, pp)
                for x in dl[:-1]:
                    ins.append((0, x))

                def last(p, x=dl[-1], key=(ps + 2, pp)):
                    dtok[key] = p(x)
                last.cost = 12
                ins.append((0, last))
            st.fill[0:0] = ins
        return ev
    for s in range(8):
        events[29 * s + GB1] = mkbar(s, 1)
        events[29 * s + GB2] = mkbar(s + 1, 0)
        if s > 0:
            fill += [(29 * s + 1, x) for x in epi(s - 1)]
            if w4load:
                fill += [(29 * s + 1, x) for x in w4load(s - 1, sW4)]
            mk = st.marker(('e', s))
            fill.append((0, mk))
            events[29 * s + 27] = (lambda p, st, mk=mk: st.drain(mk))
        if '--p3ts' in sys.argv:
            events[29 * s] = lambda p, st: stamp(p)
    p.wait_tok(dtok[(0, 0)])
    barrier(p)
    st.fired.add((0, 0))
    left = st.run(mf, [rq], fill, events)
    assert not left
    for x in epi(7):
        emit(p, x)
    return htok[7]


def w4_setup(sW4):
    return [f's_mov_b32 s{sW4}, {WT4_OFF}',
            f's_mul_i32 s{sW4 + 1}, s{sGAM}, 56', f's_mul_i32 s{sW4 + 2}, s{sW}, 14',
            f's_add_u32 s{sW4 + 1}, s{sW4 + 1}, s{sW4 + 2}', f's_lshl_b32 s{sW4 + 1}, s{sW4 + 1}, 12',
            f's_add_u32 s{sW4}, s{sW4}, s{sW4 + 1}', f's_lshl_b32 s{sW4 + 1}, s{sRHO}, 1']


def w4_slot(sg, sW4):
    o = []
    if sg == 0:
        o += w4_setup(sW4)
    else:
        o += [f's_add_u32 s{sW4 + 1}, s{sW4 + 1}, 1', f's_cmp_eq_u32 s{sW4 + 1}, 7', f's_cselect_b32 s{sW4 + 1}, 0, s{sW4 + 1}']
    o += [f's_lshl_b32 s{sW4 + 2}, s{sW4 + 1}, 13', f's_add_u32 s{sW4 + 2}, s{sW4 + 2}, s{sW4}']
    for kk in range(2):
        if kk:
            o.append(f's_add_u32 s{sW4 + 2}, s{sW4 + 2}, 4096')
        for t in range(4):
            o.append(f'buffer_load_dwordx4 {ar(((2 * sg + kk) * 4 + t) * 4, 4)}, v{vL16}, {sr(S_WS, 4)}, s{sW4 + 2} offen offset:{1024 * t} sc1')
    return o


def w4_load_block(p):
    for sg in range(7):
        for x in w4_slot(sg, sT + 16):
            p(x)


sPM = sT + 14


def p4_body(p, kend):
    p.comment('---- P4 body')
    FR, NFS, A4 = 16, 18, 88
    RES, RSF = 152, 16
    C2, vTg = 160, 161
    vB = [8, 9, 10, 11]
    vRed, vT = 12, 13
    sSL = sT
    sLT = sT + 7
    sMTW, sA, sB = sT + 10, sT + 11, sT + 12
    sMODE2 = sT + 13
    p(f'v_mul_u32_u24 v{vT}, 37, v{vLANE}')
    p(f'v_lshrrev_b32 v{vT}, 8, v{vT}')
    p(f'v_mul_u32_u24 v{vT}, 7, v{vT}')
    p(f'v_sub_u32 v{vT}, v{vLANE}, v{vT}')
    p(f'v_lshrrev_b32 v{vT}, 1, v{vT}')
    p(f'v_subrev_u32 v{vT}, s{sRHO}, v{vT}')
    p(f'v_and_b32 v{vT}, 3, v{vT}')
    p(f's_add_u32 s{sA}, s{sLAY8}, 3')
    p(f'v_add_u32 v{vTg}, s{sA}, v{vT}')
    p(f's_mul_i32 s{sA}, s{sW}, 7')
    p(f's_lshl_b32 s{sPM}, 0x7f, s{sA}')
    p(f's_mov_b32 s{sPM + 1}, 0')
    p(f'v_cmp_ne_u32 vcc, 3, v{vT}')
    p(f's_and_b64 exec, vcc, {sr(sPM, 2)}')
    poll_loop(p, f'v{vTg}')
    p.vm = []
    p(f's_mul_i32 s{sB}, s{sW}, 14336')
    p(f's_add_u32 s{sB}, s{sB}, s{sLB}')
    p(f's_add_u32 s{sB}, s{sB}, {H_OFF}')
    p(f's_lshl_b32 s{sA}, s{sRHO}, 1')
    for sg in range(7):
        if sg:
            p(f's_add_u32 s{sA}, s{sA}, 1')
            p(f's_cmp_eq_u32 s{sA}, 7')
            p(f's_cselect_b32 s{sA}, 0, s{sA}')
        p(f's_lshl_b32 s{sSL + sg}, s{sA}, 11')
        p(f's_add_u32 s{sSL + sg}, s{sSL + sg}, s{sB}')
    p(f's_lshl_b32 s{sMTW}, s{sU}, 4')
    p(f's_lshl_b32 s{sA}, s{sRHO}, 2')
    p(f's_add_u32 s{sMTW}, s{sMTW}, s{sA}')
    for i in range(4):
        p(f's_add_u32 s{sA}, s{sW}, {i + 1}')
        p(f's_and_b32 s{sA}, s{sA}, 3')
        if i < 3:
            p(f's_mul_i32 s{sLT + i}, s{sA}, 12288')
            p(f's_add_u32 s{sLT + i}, s{sLT + i}, {LS + 4096 * i}')
        p(f's_add_u32 s{sA}, s{sA}, s{sMTW}')
        p(f's_mul_i32 s{sA}, s{sA}, 57344')
        p(f'v_add_u32 v{vB[i]}, s{sA}, v{vL16}')
    p(f's_add_u32 s{sMTW}, s{sMTW}, s{sW}')
    order = [(k, i) for k in range(10) for i in range(4)] + [(k, i) for i in range(4) for k in range(10, 14)]
    mf, fq = [], []
    for f, (k, i) in enumerate(order):
        d = FR + 4 * (f % NFS)
        fq.append(dict(id=f, after=-1 if f < NFS else 4 * (f - NFS) + 3, gate='late' if k >= 10 else None, lines=[
            f'buffer_load_dwordx4 {vr(d, 4)}, v{vB[i]}, {sr(S_WS, 4)}, s{sSL + (k >> 1)} offen offset:{(k & 1) * 1024} sc1']))
        for t in range(4):
            a = vr(A4 + 16 * i + 4 * t, 4)
            mf.append((f'{M16} {a}, {ar((k * 4 + t) * 4, 4)}, {vr(d, 4)}, {"0" if k == 0 else a}', [f]))
    st = Stream(p, 8, wb=1, minage=0, urgent=1 << 20)
    st.pre([fq])
    return st, mf, fq, dict(FR=FR, A4=A4, RES=RES, C2=C2, vTg=vTg, vRed=vRed, vT=vT, sLT=sLT, sMTW=sMTW, sA=sA, sB=sB,
                            sMODE2=sMODE2, NFS=NFS)


def p4_run(p, state, kend):
    st, mf, fq, L = state
    FR, A4, RES, C2, vTg, vRed, vT = (L[k] for k in ('FR', 'A4', 'RES', 'C2', 'vTg', 'vRed', 'vT'))
    sLT, sMTW, sA, sB, sMODE2, NFS = (L[k] for k in ('sLT', 'sMTW', 'sA', 'sB', 'sMODE2', 'NFS'))
    ONE, vS = 164, 168
    fill = [(0, x) for x in xperm(vT, vX, False) + [
        f's_mul_i32 s{sA}, s{sMTW}, 14336', f's_lshl_b32 s{sB}, s{sGAM}, 11', f's_add_u32 s{sB}, s{sB}, s{sA}',
        f's_add_u32 s{sB}, s{sB}, s{sLB}',
        f'buffer_load_dwordx4 {vr(RES, 4)}, v{vT}, {sr(S_WS, 4)}, s{sB} offen sc1',
        f'buffer_load_dwordx4 {vr(RES + 4, 4)}, v{vT}, {sr(S_WS, 4)}, s{sB} offen offset:1024 sc1',
        f's_and_b32 s{sB}, s{sMTW}, 15', f's_lshl_b32 s{sB}, s{sB}, 8', f's_add_u32 s{sB}, s{sB}, {L_SA + 8}',
        f'v_lshl_add_u32 v{vT}, v{vC}, 4, s{sB}', f'ds_read_b32 v{C2}, v{vT}',
        f's_add_u32 s{sA}, s{sA}, s{sOK}', f's_add_u32 s{sB}, s{sA}, s{sKS_OUT}',
        f'v_lshlrev_b32 v{vS}, 3, v{vC}'] + [f'v_mov_b32 v{ONE + r}, {ONES}' for r in range(4)]]
    events = {}
    glate = 4 * (40 - NFS) + 3

    def late(p, st):
        p(f's_mov_b64 exec, {sr(sPM, 2)}')
        poll_loop(p, f'v{vTg}')
        p.vm = []
        st.fired.add('late')
    events[glate] = late
    R0, TB = FR, FR + 16

    def wr(i):
        def ev(p, st):
            p(f'v_add_u32 v{vRed}, s{sLT + i}, v{vL16}')
            for t in range(4):
                p(f'ds_write_b128 v{vRed}, {vr(A4 + 16 * i + 4 * t, 4)} offset:{1024 * t}')
            if i == 2:
                barrier(p)
                p(f's_mul_i32 s{sLT}, s{sW}, 12288')
                p(f's_add_u32 s{sLT}, s{sLT}, {LS}')
                p(f'v_add_u32 v{vRed}, s{sLT}, v{vL16}')
                for sl in range(3):
                    for t in range(4):
                        p(f'ds_read_b128 {vr(A4 + 16 * sl + 4 * t, 4)}, v{vRed} offset:{4096 * sl + 1024 * t}')
                f2 = []
                for x in range(16):
                    f2.append(f'v_add_f32 v{A4 + x}, v{A4 + x}, v{A4 + 16 + x}')
                for x in range(16):
                    f2.append(f'v_add_f32 v{A4 + x}, v{A4 + x}, v{A4 + 32 + x}')
                f2 += res_unpack(RES, A4 + 16)
                st.fill += [(0, x) for x in f2]
        return ev
    for i in range(3):
        events[160 + 16 * i + 15 + 2] = wr(i)
    left = st.run(mf, [fq], fill, events)
    for x in left:
        emit(p, x)
    for x in range(16):
        p(f'v_add_f32 v{A4 + x}, v{A4 + x}, v{A4 + 48 + x}')
    for x in range(16):
        p(f'v_fma_f32 v{A4 + x}, v{A4 + x}, v{C2}, v{A4 + 16 + x}')
    OUT, D = A4 + 32, A4 + 40
    out_pack(p, A4, OUT)
    mstore(p, [f'buffer_store_dwordx4 {vr(OUT, 4)}, v{vLOUT}, {sr(S_XO, 4)}, s{sA} offen',
               f'buffer_store_dwordx4 {vr(OUT + 4, 4)}, v{vLOUT}, {sr(S_XO, 4)}, s{sB} offen'])
    p.flush(mem=False)
    p(f's_cmp_eq_u32 s{sLAY8}, 0')
    p(f's_cbranch_scc0 {kend}')
    sHX, sHS, sGF = sT, sT + 1, sT + 2
    p(f's_lshl_b32 s{sA}, s{sMTW}, 7')
    p(f's_lshl_b32 s{sB}, s{sGAM}, 14')
    p(f's_add_u32 s{sA}, s{sA}, s{sB}')
    p(f's_add_u32 s{sA}, s{sA}, s{sX2}')
    p(f's_add_u32 s{sA}, s{sA}, {ST2_OFF}')
    p(f's_lshl_b32 s{sHS}, s{sU}, 7')
    p(f's_lshl_b32 s{sGF}, s{sQ}, 2')
    p(f's_add_u32 s{sGF}, s{sGF}, s{sHS}')
    p(f's_add_u32 s{sGF}, s{sGF}, {FL_OFF + G_OFF}')
    p(f's_add_u32 s{sHS}, s{sHS}, s{sB}')
    p(f's_add_u32 s{sHS}, s{sHS}, {HS_OFF}')
    p(f's_mul_i32 s{sHX}, s{sU}, 14336')
    p(f's_lshl_b32 s{sB}, s{sGAM}, 11')
    p(f's_add_u32 s{sHX}, s{sHX}, s{sB}')
    p(f's_add_u32 s{sHX}, s{sHX}, {HX_OFF}')
    p(f's_and_b32 s{sB}, s{sMTW}, 15')
    p(f's_cmp_eq_u32 s{sB}, 15')
    for r in (sHX, sHS, sGF):
        p(f's_cselect_b32 s{r}, s{r}, {OOB}')
    p(f'buffer_store_dwordx4 {vr(OUT, 4)}, v{vLOUT}, {sr(S_WS, 4)}, s{sHX} offen sc1')
    p(f'buffer_store_dwordx4 {vr(OUT + 4, 4)}, v{vLOUT}, {sr(S_WS, 4)}, s{sHX} offen offset:1024 sc1')
    stats_out(p, OUT, ONE, D, sA, vS, sHS)
    p.wait(vm=0)
    p(f'v_mov_b32 v{vX}, 7')
    p(f'buffer_store_dword v{vX}, off, {sr(S_WS, 4)}, s{sGF} sc1')
    barrier(p)
    flag_store(p, 7)
```

```python
from g4a import *
from g4b import *
from g4c import *


def publish(p, val, tok=None, halo=False):
    if tok is None:
        p.wait(vm=0)
    else:
        p.wait_tok(tok)
    barrier(p)
    flag_store(p, val)
    if halo:
        p(f's_add_u32 s{sCNT}, s{sFLO}, {G_OFF}')
        p(f'buffer_store_dword v{vX}, off, {sr(S_WS, 4)}, s{sCNT} sc1')


def build():
    p = Prog()
    kn = NAME + '_kernel'
    kend = kn + '_end'
    tok = prologue(p, kn)
    stamp(p)
    init0(p, tok)
    stamp(p)
    p1_l0(p, tok, verify_load())
    stamp(p)
    verify(p)
    set_layer(p, 0)
    for x in w3_loads(0, NW3A, sT):
        p(x)
    p.flush(mem=False)
    p.wait(lg=0)
    p.label('Ltail')
    p.vm = []
    stamp(p)

    def mid(p):
        p(f's_cmp_eq_u32 s{sLAY8}, 0')
        cond_block(p, 's_cbranch_scc1', w2_dma)
    otok = p1_tail(p, mid=mid)
    publish(p, 1)
    stamp(p)
    p.flush(mem=False)
    p(f's_cmp_ge_u32 s{sQ}, 28')
    p('s_cbranch_scc1 Lidle')
    st2 = p2_pre(p)

    def m2(p):
        p(f's_lshr_b32 s100, s{sRHO}, 1')
        p('s_lshl_b32 s100, s100, 4')
        p('s_lshl_b32 s100, 0xffff, s100')
        p(f's_cmp_eq_u32 s{sRHO}, 1')
        p('s_cselect_b32 s100, -1, s100')
        p('s_mov_b32 s101, 0')
    stamp(p)
    wait_flags(p, 1, m2)
    stamp(p)
    p2_body(p, st2)
    publish(p, 2)
    stamp(p)
    p.flush(mem=False)
    p(f's_cmp_eq_u32 s{sLAY8}, 0')
    p('s_cbranch_scc0 Lno3t')
    w3_colsum(p)
    p.flush(mem=False)
    p.wait(lg=0)
    p.label('Lno3t')

    def m3(p):
        p('s_mov_b32 s100, 0x0fffffff')
        p('s_mov_b32 s101, 0')
    stamp(p)
    wait_flags(p, 2, m3)
    stamp(p)
    p(f's_cmp_eq_u32 s{sLAY8}, 0')
    p('s_cbranch_scc0 Lno4l')
    w4_load_block(p)
    p.flush()
    p.label('Lno4l')
    htok = p3_body(p, None)
    publish(p, 6)
    stamp(p)
    st4 = p4_body(p, kend)
    stamp(p)
    p4_run(p, st4, kend)
    p.flush(mem=False)
    p.label('Lidle')
    p.vm = []
    stamp(p)
    p(f's_cmp_eq_u32 s{sLAY8}, 0')
    p(f's_cbranch_scc0 {kend}')

    def m1(p):
        p(f's_cmp_eq_u32 s{sHF}, 0')
        p('s_mov_b32 s100, 0x0fffff80')
        p('s_cselect_b32 s100, 0x3fff, s100')
        p(f's_or_b32 s101, s{sHF}, 0')
        p(f's_cmp_eq_u32 s{sU}, 0')
        p('s_cselect_b32 s101, 1, s101')
        p('s_cmp_eq_u32 s101, 0')
        p('s_cselect_b32 s101, 0x0fe00000, 0')
    S1 = p1_l1_pre(p)
    wait_flags(p, 7, m1)
    stamp(p)
    set_layer(p, 1)
    p1_l1_run(p, S1)
    p.flush(mem=False)
    p.wait(lg=0)
    p('s_branch Ltail')
    p.label(kend)
    if TS:
        p.raw('    s_cmp_ge_u32 s2, 256')
        p.raw(f'    s_cbranch_scc1 {kend}2')
        stamp(p)
        p.label(kend + '2')
    p('s_endpgm')
    p.label('Lcode_end')
    txt = f'; @launch grid=(256,1,1) block=(256,1,1) lds={LDS_BYTES}\n'
    txt += '.amdgcn_target "amdgcn-amd-amdhsa--gfx950"\n.text\n' + p.text()
    txt += '.section .rodata,"a"\n.p2align 6\n' + kd(kn)
    print('instrs', p.ninstr, 'nop states', p.nops, file=sys.stderr)
    return txt


if __name__ == '__main__':
    out = sys.argv[1] if len(sys.argv) > 1 and not sys.argv[1].startswith('--') else f'cdna_kernels/{NAME}.s'
    open(out, 'w').write(build())
```
